```python
import torch

def _softmax(x, axis=-1):
    return torch.softmax(x, dim=axis)
def _gelu(x):
    return torch.nn.functional.gelu(x, approximate="tanh")
def _silu(x):
    return torch.nn.functional.silu(x)
def _sigmoid(x):
    return torch.sigmoid(x)
def _layernorm(x, axis=-1, eps=1e-5):
    m = x.mean(dim=axis, keepdim=True)
    v = x.var(dim=axis, keepdim=True, unbiased=False)
    return (x - m) / torch.sqrt(v + eps)
def _scatter_add(tgt, idx, src, axis=0):
    return tgt.clone().index_add_(axis, idx, src)
def _segment_sum(src, seg, n):
    out = torch.zeros((n,) + src.shape[1:], dtype=src.dtype)
    return out.index_add_(0, seg, src)
def _pad(x, pw):
    flat = tuple(v for pair in reversed(pw) for v in pair)
    return torch.nn.functional.pad(x, flat)

kernel_name = 'standalone__self_sup_conv_stem_hubert__speech'

def setup_inputs():

    _w = (lambda a: (lambda t: t.to(torch.bfloat16) if t.is_floating_point() else t)(torch.as_tensor(a)))
    B, T, D, K = 2, 4000, 256, 15
    scale = (1.0 / (K * D)) ** 0.5
    return {
        "x": _w((lambda *s: torch.randn(*s, dtype=torch.bfloat16) * 0.05)(B, T, D)),
        "w": _w((lambda *s: torch.randn(*s, dtype=torch.bfloat16) * 0.05)(K, D, D) * scale),
        "b": _w((lambda *s: torch.randn(*s, dtype=torch.bfloat16) * 0.05)(D) * 0.1),
        "gamma": _w(torch.ones((D,), dtype=float)),
        "beta": _w(torch.zeros((D,), dtype=float)),
    }

def reference(x, w, b, gamma, beta):
    B, T, D = x.shape
    K = w.shape[0]
    s = 2
    L = (T - K) // s + 1
    y = torch.einsum('blc,cd->bld', x[:, 0 : s * L : s, :], w[0])
    for i in range(1, K):
        y = y + torch.einsum('blc,cd->bld', x[:, i : i + s * L : s, :], w[i])
    y = y + b[None, None, :]
    mu = y.mean(1, keepdims=True)
    var = ((y - mu) ** 2).mean(1, keepdims=True)
    yn = (y - mu) / torch.sqrt(var + 1e-5)
    yn = yn * gamma[None, None, :] + beta[None, None, :]
    return _gelu(yn)
```

```python
import sys, struct

STAMPS = "--stamps" in sys.argv
OUT = [a for a in sys.argv[1:] if not a.startswith("--")][0]
NAME = "standalone__self_sup_conv_stem_hubert__speech_kernel"

L_OUT = 1993
WREG = 40960


def f32(x):
    return "0x%08x" % struct.unpack("<I", struct.pack("<f", x))[0]


class G:
    def __init__(self):
        self.lines = []
        self.vm = []
        self.vm_done = 0
        self.lg = []
        self.lg_done = 0

    def e(self, s):
        self.lines.append("    " + s)

    def c(self, s):
        self.lines.append("    ; " + s)

    def label(self, s):
        self.lines.append(s + ":")

    def vmop(self, s, tag=None):
        self.e(s)
        self.vm.append(tag)

    def lgop(self, s, tag=None):
        self.e(s)
        self.lg.append(tag)

    def wait_vm(self, tag):
        idx = max(i for i, t in enumerate(self.vm) if t == tag)
        if idx < self.vm_done:
            return
        n = len(self.vm) - 1 - idx
        assert n <= 63
        self.e("s_waitcnt vmcnt(%d)" % n)
        self.vm_done = idx + 1

    def wait_vm_all(self):
        self.e("s_waitcnt vmcnt(0)")
        self.vm_done = len(self.vm)

    def wait_lg(self, tag):
        idx = max(i for i, t in enumerate(self.lg) if t == tag)
        if idx < self.lg_done:
            return
        n = min(14, len(self.lg) - 1 - idx)
        self.e("s_waitcnt lgkmcnt(%d)" % n)
        self.lg_done = len(self.lg) - n

    def wait_lg_all(self):
        self.e("s_waitcnt lgkmcnt(0)")
        self.lg_done = len(self.lg)


g = G()
nstamp = [0]


def stamp():
    if not STAMPS:
        return
    k = nstamp[0]
    nstamp[0] += 1
    g.e("s_memrealtime s[%d:%d]" % (80 + 2 * k, 81 + 2 * k))
    g.wait_lg_all()


S_X, S_W, S_OUT, S_WS, S_DBG = 20, 24, 28, 32, 36
sW, sLB, sXO, sT, sMT, sNT, sLT, sB, sREC, sT2, sT3 = 40, 41, 42, 43, 44, 45, 46, 47, 48, 49, 50
sSO = 52
sMASK = 60
vLANE, vN, vQ = 1, 2, 3
vOA = 4
vOB = 12
vA = 16
vB = 24
vT = 26
vW = 32
vFE = 64
NV = 184
aACC = 0
aFO = 64
NA = 176
vPAR = 184
vST = 190
vSEL = 191
vREC = 192
NV = 196


def F(s, ch):
    if s % 2 == 0:
        r = vFE + ((s // 2) * 2 + ch) * 4
        return "v[%d:%d]" % (r, r + 3)
    r = aFO + ((s // 2) * 2 + ch) * 4
    return "a[%d:%d]" % (r, r + 3)


def Wr(buf, ch, u, h=None):
    r = vW + buf * 16 + (ch * 2 + u) * 4
    if h is None:
        return "v[%d:%d]" % (r, r + 3)
    return "v[%d:%d]" % (r + 2 * h, r + 2 * h + 1)


def ACC(j, u):
    r = aACC + (j * 2 + u) * 4
    return "a[%d:%d]" % (r, r + 3)


g.e("s_cmp_ge_u32 s2, 256")
g.e("s_cbranch_scc1 L_end")
g.e("s_load_dwordx16 s[4:19], s[0:1], 0")
if STAMPS:
    g.e("s_memrealtime s[80:81]")
    nstamp[0] = 1
g.e("v_and_b32 v%d, 63, v0" % vLANE)
g.e("v_lshrrev_b32 v%d, 6, v0" % vT)
g.e("v_and_b32 v%d, 15, v0" % vN)
g.e("v_readfirstlane_b32 s%d, v%d" % (sW, vT))
g.e("v_bfe_u32 v%d, v0, 4, 2" % vQ)
g.e("s_and_b32 s%d, s2, 7" % sT)
g.e("s_lshr_b32 s%d, s2, 3" % sT2)
g.e("s_lshr_b32 s%d, s%d, 1" % (sMT, sT))
g.e("s_lshl_b32 s%d, s%d, 3" % (sMT, sMT))
g.e("s_lshr_b32 s%d, s%d, 2" % (sT3, sT2))
g.e("s_add_u32 s%d, s%d, s%d" % (sMT, sMT, sT3))
g.e("s_and_b32 s%d, s%d, 1" % (sNT, sT))
g.e("s_lshl_b32 s%d, s%d, 2" % (sNT, sNT))
g.e("s_and_b32 s%d, s%d, 3" % (sT3, sT2))
g.e("s_add_u32 s%d, s%d, s%d" % (sNT, sNT, sT3))
g.e("s_lshr_b32 s%d, s%d, 4" % (sB, sMT))
g.e("s_and_b32 s%d, s%d, 15" % (sLT, sMT))
g.e("s_mul_i32 s%d, s%d, %d" % (sLB, sW, WREG))
g.e("s_mul_i32 s%d, s%d, 2048000" % (sXO, sB))
g.e("s_lshl_b32 s%d, s%d, 17" % (sT, sLT))
g.e("s_add_u32 s%d, s%d, s%d" % (sXO, sXO, sT))
g.e("s_lshl_b32 s%d, s%d, 3" % (sT, sB))
g.e("s_add_u32 s%d, s%d, s%d" % (sT, sT, sNT))
g.e("s_lshl_b32 s%d, s%d, 12" % (sREC, sT))
g.e("s_lshl_b32 s%d, s%d, 4" % (sT3, sT))
g.e("s_mov_b32 s51, s%d" % sT3)
for k in range(4):
    g.e("s_mov_b32 s%d, %d" % (sSO + k, 4096 * k))

g.e("v_lshrrev_b32 v%d, 3, v%d" % (vT, vLANE))
g.e("v_lshlrev_b32 v%d, 10, v%d" % (vT, vT))
g.e("v_and_b32 v%d, 7, v%d" % (vT + 1, vLANE))
g.e("v_lshlrev_b32 v%d, 4, v%d" % (vT + 1, vT + 1))
g.e("v_or_b32 v%d, v%d, v%d" % (vT, vT, vT + 1))
g.e("s_lshl_b32 s%d, s%d, 7" % (sT, sW))
g.e("v_or_b32 v%d, s%d, v%d" % (vT, sT, vT))
for k in range(8):
    x = ((k & 1) << 10) | ((k & 6) << 4)
    g.e("v_xor_b32 v%d, 0x%x, v%d" % (vOA + k, x, vT))
    if k & 3:
        g.e("v_add_u32 v%d, %d, v%d" % (vOA + k, (k & 3) * 7168, vOA + k))
g.e("v_lshrrev_b32 v%d, 2, v%d" % (vT, vLANE))
g.e("v_lshlrev_b32 v%d, 9, v%d" % (vT, vT))
g.e("v_lshrrev_b32 v%d, 5, v%d" % (vT + 1, vLANE))
g.e("v_lshlrev_b32 v%d, 1, v%d" % (vT + 1, vT + 1))
g.e("v_and_b32 v%d, 3, v%d" % (vT + 2, vLANE))
g.e("v_xor_b32 v%d, v%d, v%d" % (vT + 1, vT + 1, vT + 2))
g.e("v_lshl_add_u32 v%d, v%d, 4, v%d" % (vT, vT + 1, vT))
g.e("s_lshl_b32 s%d, s%d, 15" % (sT, sW))
g.e("s_lshl_b32 s%d, s%d, 6" % (sT2, sNT))
g.e("s_add_u32 s%d, s%d, s%d" % (sT, sT, sT2))
g.e("v_add_u32 v%d, s%d, v%d" % (vOB, sT, vT))
for be in range(1, 4):
    g.e("v_add_u32 v%d, %d, v%d" % (vOB + be, be * 7168, vOB))
for k0 in range(2):
    g.e("v_add_u32 v%d, %d, v%d" % (vT, k0, vN))
    g.e("v_and_b32 v%d, 1, v%d" % (vT + 1, vT))
    g.e("v_lshlrev_b32 v%d, 7, v%d" % (vT + 1, vT + 1))
    g.e("v_and_b32 v%d, 6, v%d" % (vT + 2, vT))
    g.e("v_xor_b32 v%d, v%d, v%d" % (vT + 2, vT + 2, vQ))
    g.e("v_lshlrev_b32 v%d, 4, v%d" % (vT + 2, vT + 2))
    g.e("v_or_b32 v%d, v%d, v%d" % (vT + 1, vT + 1, vT + 2))
    g.e("v_lshl_add_u32 v%d, v%d, 10, v%d" % (vT + 1, vT, vT + 1))
    for e1 in range(2):
        for ch in range(2):
            r = vA + (k0 * 2 + e1) * 2 + ch
            g.e("v_xor_b32 v%d, 0x%x, v%d" % (r, (e1 << 7) | (ch << 6), vT + 1))
            g.e("v_add_u32 v%d, s%d, v%d" % (r, sLB, r))
g.e("v_lshrrev_b32 v%d, 2, v%d" % (vT, vN))
g.e("v_lshl_add_u32 v%d, v%d, 3, v%d" % (vT, vQ, vT))
g.e("v_lshlrev_b32 v%d, 6, v%d" % (vT, vT))
g.e("v_and_b32 v%d, 3, v%d" % (vT + 1, vN))
g.e("v_lshl_add_u32 v%d, v%d, 3, v%d" % (vT, vT + 1, vT))
g.e("v_and_b32 v%d, 1, v%d" % (vT + 1, vQ))
g.e("v_lshl_add_u32 v%d, v%d, 5, v%d" % (vT, vT + 1, vT))
g.e("v_add_u32 v%d, s%d, v%d" % (vB, sLB, vT))
g.e("v_xor_b32 v%d, 32, v%d" % (vT, vT))
g.e("v_add_u32 v%d, s%d, v%d" % (vB + 1, sLB, vT))
g.e("s_lshl_b32 s%d, s%d, 7" % (sT, sLT))
g.e("s_lshl_b32 s%d, s%d, 1" % (sT2, sW))
g.e("s_add_u32 s%d, s%d, s%d" % (sT, sT, sT2))
g.e("s_sub_u32 s%d, %d, s%d" % (sT, L_OUT, sT))
g.e("v_lshlrev_b32 v%d, 5, v%d" % (vT, vQ))
g.e("v_sub_u32 v%d, s%d, v%d" % (vT, sT, vT))
for jj in range(2):
    for reg in range(4):
        m = sMASK + (jj * 4 + reg) * 2
        g.e("v_cmp_lt_i32 s[%d:%d], %d, v%d" % (m, m + 1, 8 * reg + jj, vT))
g.e("s_lshl_b32 s%d, s%d, 16" % (sT, sLT))
g.e("s_lshl_b32 s%d, s%d, 10" % (sT2, sW))
g.e("s_add_u32 s%d, s%d, s%d" % (sT, sT, sT2))
g.e("s_lshl_b32 s%d, s%d, 6" % (sT2, sNT))
g.e("s_add_u32 s%d, s%d, s%d" % (sT, sT, sT2))
g.e("v_and_b32 v%d, 1, v%d" % (vT, vN))
g.e("v_mul_u32_u24 v%d, 15, v%d" % (vT + 1, vT))
g.e("v_add_u32 v%d, v%d, v%d" % (vT + 1, vT + 1, vN))
g.e("v_lshlrev_b32 v%d, 1, v%d" % (vT + 1, vT + 1))
g.e("v_lshl_add_u32 v%d, v%d, 14, v%d" % (vT + 1, vQ, vT + 1))
g.e("v_add_u32 v%d, s%d, v%d" % (vST, sT, vT + 1))
g.e("v_mov_b32 v%d, 0x05040100" % vSEL)
g.e("v_mov_b32 v%d, 0x03020706" % (vT + 1))
g.e("v_cmp_eq_u32 vcc, 1, v%d" % vT)
g.e("s_nop 1")
g.e("v_cndmask_b32 v%d, v%d, v%d, vcc" % (vSEL, vSEL, vT + 1))
g.e("s_lshl_b32 s%d, s%d, 8" % (sT, sLT))
g.e("s_add_u32 s%d, s%d, s%d" % (sT, sT, sREC))
g.e("v_lshl_add_u32 v%d, v%d, 2, v%d" % (vT, vN, vQ))
g.e("v_lshlrev_b32 v%d, 2, v%d" % (vT, vT))
g.e("v_mov_b32 v%d, v%d" % (vREC + 2, vT))
g.e("v_add_u32 v%d, s%d, v%d" % (vREC, sT, vT))
g.e("s_lshl_b32 s%d, s%d, 10" % (sT, sW))
g.e("s_add_u32 s%d, s%d, s%d" % (sT, sT, sREC))
g.e("v_lshlrev_b32 v%d, 4, v%d" % (vT, vN))
g.e("v_lshl_add_u32 v%d, v%d, 8, v%d" % (vT, vQ, vT))
g.e("v_add_u32 v%d, s%d, v%d" % (vREC + 1, sT, vT))
g.e("s_lshl_b32 s%d, s%d, 6" % (sT, sNT))
g.e("v_lshlrev_b32 v%d, 1, v%d" % (vT + 2, vN))
g.e("v_add_u32 v%d, s%d, v%d" % (vT + 2, sT, vT + 2))
g.e("v_mov_b32 v%d, -1" % (vT + 3))

g.e("s_waitcnt lgkmcnt(0)")
stamp()
def srd(d, lo, size):
    g.e("s_mov_b32 s%d, s%d" % (d, lo))
    g.e("s_and_b32 s%d, s%d, 0xffff" % (d + 1, lo + 1))
    g.e("s_mov_b32 s%d, %d" % (d + 2, size))
    g.e("s_mov_b32 s%d, 0x00020000" % (d + 3))

srd(S_X, 4, 4096000)
srd(S_W, 6, 15 * 131072)
srd(S_WS, 18, 65536)
srd(S_DBG, 16, 256)
g.e("s_mul_i32 s%d, s%d, %d" % (sT, sB, L_OUT * 512))
g.e("s_add_u32 s%d, s14, s%d" % (S_OUT, sT))
g.e("s_addc_u32 s%d, s15, 0" % (S_OUT + 1))
g.e("s_and_b32 s%d, s%d, 0xffff" % (S_OUT + 1, S_OUT + 1))
g.e("s_mov_b32 s%d, %d" % (S_OUT + 2, L_OUT * 512))
g.e("s_mov_b32 s%d, 0x00020000" % (S_OUT + 3))


def dmaA(par, slot0, kaps, inter=None):
    ops = []
    for kap in kaps:
        def f(kap=kap):
            if kap % 4 == 0 or kap == kaps[0]:
                kb = kap & ~3
                g.e("s_add_u32 m0, s%d, %d" % (sLB, (slot0 + kb) * 1024))
                g.e("s_add_u32 s%d, s%d, %d" % (sT, sXO, (16 * kb + par) * 512))
            g.vmop("buffer_load_dwordx4 v%d, s[%d:%d], s%d offen offset:%d lds" % (
                vOA + (kap & 7), S_X, S_X + 3, sT, (kap & 3) * 1024), ("A", par, kap))
        ops.append(f)
    return ops


def dmaB(i, slot0):
    ops = []
    for be in range(4):
        def f(be=be):
            if be == 0:
                g.e("s_add_u32 m0, s%d, %d" % (sLB, slot0 * 1024))
                g.e("s_mov_b32 s%d, %d" % (sT2, i * 131072))
            g.vmop("buffer_load_dwordx4 v%d, s[%d:%d], s%d offen offset:%d lds" % (
                vOB + be, S_W, S_W + 3, sT2, be * 1024), ("B", i, be))
        ops.append(f)
    return ops


def rdF(s, ch, slot0):
    par, e, k0 = s & 1, (s & 15) >> 1, s >> 4
    def f():
        g.lgop("ds_read_b128 %s, v%d offset:%d" % (F(s, ch), vA + (k0 * 2 + (e & 1)) * 2 + ch,
                                                   slot0 * 1024 + (e >> 1) * 256), ("F", s, ch))
    return f


def rdW(i, buf, ch, u, h, slot0):
    def f():
        g.lgop("ds_read_b64_tr_b16 %s, v%d offset:%d" % (Wr(buf, ch, u, h), vB + u,
                                                         slot0 * 1024 + ch * 2048 + h * 256), ("W", i, ch, u, h))
    return f


taps = [0, 2, 4, 6, 8, 10, 12, 14, 1, 3, 5, 7, 9, 11, 13]
BSLOT = [17, 21, 25, 29, 33]
ASLOT = 0

g.e("s_cmp_lg_u32 s%d, 0" % sW)
g.e("s_cbranch_scc1 L_noinv")
g.e("buffer_atomic_swap v%d, v%d, s[%d:%d], 0 offen sc0 sc1" % (vT + 3, vREC, S_WS, S_WS + 3))
g.label("L_noinv")
for k, base in enumerate((10, 12, 8)):
    g.vmop("global_load_ushort v%d, v%d, s[%d:%d]" % (vPAR + 2 * k, vT + 2, base, base + 1), "P")
    g.vmop("global_load_ushort v%d, v%d, s[%d:%d] offset:32" % (vPAR + 2 * k + 1, vT + 2, base, base + 1), "P")

for f in dmaB(taps[0], BSLOT[0]):
    f()
for f in dmaA(0, ASLOT, list(range(17))):
    f()
for t in range(1, 5):
    for f in dmaB(taps[t], BSLOT[t]):
        f()

g.wait_vm(("A", 0, 16))
stamp()
g.e("s_cmp_lg_u32 s%d, 0" % sW)
g.e("s_cbranch_scc1 L_nosig")
g.e("v_mov_b32 v%d, 1" % vT)
g.e("v_mov_b32 v%d, s51" % (vT + 1))
g.e("s_mov_b64 exec, 1")
g.e("buffer_atomic_add v%d, v%d, s[%d:%d], 0 offen sc1" % (vT, vT + 1, S_DBG, S_DBG + 3))
g.e("s_mov_b64 exec, -1")
g.e("s_branch L_sigdone")
g.label("L_nosig")
g.e("global_load_ushort v%d, v%d, s[8:9]" % (vT, vT + 2))
g.label("L_sigdone")
g.vm.append("SIG")

pre = []
for u in range(2):
    for h in range(2):
        pre.append(rdW(taps[0], 0, 0, u, h, BSLOT[0]))
for s in range(0, 16, 2):
    pre.append(rdF(s, 0, ASLOT))
for f in pre:
    f()
rest = []
for u in range(2):
    for h in range(2):
        rest.append(rdW(taps[0], 0, 1, u, h, BSLOT[0]))
for s in range(0, 16, 2):
    rest.append(rdF(s, 1, ASLOT))
for s in range(16, 30, 2):
    rest.append(rdF(s, 0, ASLOT))
    rest.append(rdF(s, 1, ASLOT))

first_use = set()


def mfma(j, u, i, ch, buf):
    s = 2 * j + i
    g.wait_lg(("F", s, ch))
    g.wait_lg(("W", i, ch, u, 1))
    c = ACC(j, u) if (j, u) in first_use else "0"
    first_use.add((j, u))
    g.e("v_mfma_f32_16x16x32_bf16 %s, %s, %s, %s" % (ACC(j, u), F(s, ch), Wr(buf, ch, u), c))


for t, i in enumerate(taps):
    buf = t & 1
    g.c("---- tap %d ----" % i)
    extra = {}

    def add(pos, f):
        extra.setdefault(pos, []).append(f)

    if t == 0:
        for k, f in enumerate(rest):
            add(k, f)
        nxt = taps[1]
        add(26, lambda nxt=nxt: g.wait_vm(("B", nxt, 3)))
        k = 26
        for ch in range(2):
            for u in range(2):
                for h in range(2):
                    add(min(31, k), rdW(nxt, 1, ch, u, h, BSLOT[1]))
                    k += 1
    else:
        pos = 1
        if t == 1:
            add(0, lambda: g.wait_lg_all())
            for f in dmaA(1, ASLOT, list(range(17))):
                add(pos, f)
                pos += 1
            for f in dmaB(taps[5], BSLOT[0]):
                add(pos, f)
                pos += 1
        if t + 5 < len(taps):
            p0 = max(pos, 17)
            ops = dmaB(taps[t + 5], BSLOT[t % 5])
            add(p0, lambda i=i: g.wait_lg(("W", i, 1, 1, 1)))
            for k, f in enumerate(ops):
                add(p0 + k, f)
        if t + 1 < len(taps):
            nxt = taps[t + 1]
            p = 8 if t != 1 else 22
            add(p, lambda nxt=nxt: g.wait_vm(("B", nxt, 3)))
            k = p
            for ch in range(2):
                for u in range(2):
                    for h in range(2):
                        add(k, rdW(nxt, (t + 1) & 1, ch, u, h, BSLOT[(t + 1) % 5]))
                        k += 1
        if t in (5, 6):
            ss = [s for s in range(1, 28, 2)]
            ss = ss[:7] if t == 5 else ss[7:]
            k = 16
            add(k, lambda: g.wait_vm(("A", 1, 16)))
            for s in ss:
                for ch in range(2):
                    add(k, rdF(s, ch, ASLOT))
                    k += 1
    n = 0
    for ch in range(2):
        for j in range(8):
            for u in range(2):
                for f in extra.get(n, []):
                    f()
                mfma(j, u, i, ch, buf)
                n += 1
    for p in extra:
        assert p < 32, p

stamp()
g.c("---- K reduction across waves ----")
vY = 32
vR = 64
vAW, vAR, vAR2 = 26, 27, 28
g.e("v_lshlrev_b32 v%d, 4, v%d" % (vT + 3, vLANE))
g.e("v_add_u32 v%d, s%d, v%d" % (vAW, sLB, vT + 3))
g.e("s_lshl_b32 s%d, s%d, 12" % (sT, sW))
g.e("v_add_u32 v%d, s%d, v%d" % (vAR, sT, vT + 3))
g.e("v_add_u32 v%d, %d, v%d" % (vAR2, 2 * WREG, vAR))
g.e("v_mov_b32 v%d, s51" % (vT + 4))
g.e("s_nop 4")
for j in range(8):
    for u in range(2):
        g.lgop("ds_write_b128 v%d, %s offset:%d" % (vAW, ACC(j, u), (j * 2 + u) * 1024))
g.vmop("buffer_load_dword v%d, v%d, s[%d:%d], 0 offen sc1" % (vT + 5, vT + 4, S_DBG, S_DBG + 3), "CNT")
g.wait_lg_all()
g.e("s_barrier")
for src in range(4):
    for blk in range(4):
        r = vR + (src * 4 + blk) * 4
        g.lgop("ds_read_b128 v[%d:%d], v%d offset:%d" % (r, r + 3, vAR if src < 2 else vAR2,
                                                         (src & 1) * WREG + blk * 1024), ("R", src, blk))
        if src == 3 and blk == 2:
            pass
for blk in range(4):
    g.wait_lg(("R", 1, blk))
    for k in range(4):
        g.e("v_add_f32 v%d, v%d, v%d" % (vY + blk * 4 + k, vR + blk * 4 + k, vR + 16 + blk * 4 + k))
for blk in range(4):
    g.wait_lg(("R", 3, blk))
    for k in range(4):
        g.e("v_add_f32 v%d, v%d, v%d" % (vR + 32 + blk * 4 + k, vR + 32 + blk * 4 + k, vR + 48 + blk * 4 + k))
for k in range(16):
    g.e("v_add_f32 v%d, v%d, v%d" % (vY + k, vY + k, vR + 32 + k))
stamp()
g.c("---- per-wave statistics ----")
vM = 64
for jj in range(2):
    for u in range(2):
        for reg in range(4):
            m = sMASK + (jj * 4 + reg) * 2
            k = (jj * 2 + u) * 4 + reg
            g.e("v_cndmask_b32 v%d, 0, v%d, s[%d:%d]" % (vM + k, vY + k, m, m + 1))
vS0, vS1, vQ0, vQ1 = 80, 81, 82, 83
for u, (vs, vq) in enumerate(((vS0, vQ0), (vS1, vQ1))):
    ks = [(jj * 2 + u) * 4 + reg for jj in range(2) for reg in range(4)]
    g.e("v_add_f32 v%d, v%d, v%d" % (vs, vM + ks[0], vM + ks[1]))
    g.e("v_mul_f32 v%d, v%d, v%d" % (vq, vM + ks[0], vM + ks[0]))
    g.e("v_fmac_f32 v%d, v%d, v%d" % (vq, vM + ks[1], vM + ks[1]))
    for k in ks[2:]:
        g.e("v_add_f32 v%d, v%d, v%d" % (vs, vs, vM + k))
        g.e("v_fmac_f32 v%d, v%d, v%d" % (vq, vM + k, vM + k))


def rowreduce(a, b, c, d):
    g.e("s_nop 1")
    g.e("v_permlane32_swap_b32 v%d, v%d" % (a, b))
    g.e("v_permlane32_swap_b32 v%d, v%d" % (c, d))
    g.e("s_nop 1")
    g.e("v_add_f32 v%d, v%d, v%d" % (a, a, b))
    g.e("v_add_f32 v%d, v%d, v%d" % (c, c, d))
    g.e("s_nop 1")
    g.e("v_permlane16_swap_b32 v%d, v%d" % (a, c))
    g.e("s_nop 1")
    g.e("v_add_f32 v%d, v%d, v%d" % (a, a, c))


rowreduce(vS0, vS1, vQ0, vQ1)
STAT1 = 20480
STAT2 = 24576
g.e("s_lshl_b32 s%d, s%d, 8" % (sT, sW))
g.e("v_add_u32 v%d, s%d, v%d" % (vT, sT, vREC + 2))
g.lgop("ds_write_b32 v%d, v%d offset:%d" % (vT, vS0, STAT1))
g.wait_lg_all()
g.e("s_barrier")
g.e("s_cmp_lg_u32 s%d, 0" % sW)
g.e("s_cbranch_scc1 L_nopub")
for k in range(4):
    g.e("ds_read_b32 v%d, v%d offset:%d" % (84 + k, vREC + 2, STAT1 + 256 * k))
g.e("s_waitcnt lgkmcnt(0)")
g.e("v_add_f32 v84, v84, v85")
g.e("v_add_f32 v86, v86, v87")
g.e("v_add_f32 v84, v84, v86")
g.e("v_min_u32 v84, 0xfffffffe, v84")
g.e("buffer_store_dword v84, v%d, s[%d:%d], 0 offen sc0 sc1" % (vREC, S_WS, S_WS + 3))
g.label("L_nopub")
stamp()
g.c("---- wait until all 16 records of the group were invalidated this launch ----")
g.e("s_mov_b32 s%d, 0" % sT3)
g.label("L_cnt")
g.e("s_waitcnt vmcnt(0)")
g.e("v_readfirstlane_b32 s%d, v%d" % (sT, vT + 5))
g.e("s_cmp_ge_u32 s%d, 16" % sT)
g.e("s_cbranch_scc1 L_cntok")
g.e("s_add_u32 s%d, s%d, 1" % (sT3, sT3))
g.e("s_cmp_ge_u32 s%d, 0x100000" % sT3)
g.e("s_cbranch_scc1 L_cntok")
g.e("buffer_load_dword v%d, v%d, s[%d:%d], 0 offen sc1" % (vT + 5, vT + 4, S_DBG, S_DBG + 3))
g.e("s_branch L_cnt")
g.label("L_cntok")
g.c("---- gather ----")
g.label("L_poll")
g.e("buffer_load_dwordx4 v[84:87], v%d, s[%d:%d], 0 offen sc0 sc1" % (vREC + 1, S_WS, S_WS + 3))
g.e("s_add_u32 s%d, s%d, 1" % (sT3, sT3))
g.e("s_waitcnt vmcnt(0)")
g.e("v_max3_u32 v88, v84, v85, v86")
g.e("v_max_u32 v88, v88, v87")
g.e("v_cmp_eq_u32 vcc, -1, v88")
g.e("s_cmp_ge_u32 s%d, 0x100000" % sT3)
g.e("s_cbranch_scc1 L_pollok")
g.e("s_cbranch_vccnz L_poll")
g.label("L_pollok")
stamp()
rowreduce(84, 86, 85, 87)
g.e("ds_write_b32 v%d, v84 offset:%d" % (vT, STAT2))
g.e("v_lshlrev_b32 v%d, 4, v%d" % (vT + 1, vN))
g.e("s_waitcnt lgkmcnt(0)")
g.e("s_barrier")
for k in range(4):
    g.e("ds_read_b128 v[%d:%d], v%d offset:%d" % (88 + 4 * k, 91 + 4 * k, vT + 1, STAT2 + 256 * k))
for k in range(6):
    g.e("v_lshlrev_b32 v%d, 16, v%d" % (vPAR + k, vPAR + k))
g.e("s_waitcnt lgkmcnt(0)")
for k in range(4):
    g.e("v_add_f32 v%d, v%d, v%d" % (88 + k, 88 + k, 92 + k))
    g.e("v_add_f32 v%d, v%d, v%d" % (96 + k, 96 + k, 100 + k))
for k in range(4):
    g.e("v_add_f32 v%d, v%d, v%d" % (88 + k, 88 + k, 96 + k))
g.e("s_mov_b32 s%d, %s" % (sT, f32(1.0 / L_OUT)))
g.e("s_mov_b32 s%d, %s" % (sT2, f32(1e-5)))
vSC, vSH = 104, 106
for u in range(2):
    S, Q = 88 + 2 * u, 89 + 2 * u
    g.e("v_mul_f32 v%d, s%d, v%d" % (S, sT, S))
    g.e("v_mul_f32 v%d, s%d, v%d" % (Q, sT, Q))
    g.e("v_fma_f32 v%d, -v%d, v%d, v%d" % (Q, S, S, Q))
    g.e("v_max_f32 v%d, 0, v%d" % (Q, Q))
    g.e("v_add_f32 v%d, s%d, v%d" % (Q, sT2, Q))
    g.e("v_rsq_f32 v%d, v%d" % (Q, Q))
    g.e("v_add_f32 v%d, v%d, v%d" % (S, S, vPAR + 4 + u))
    g.e("v_sub_f32 v%d, v%d, v%d" % (S, S, vPAR + 4 + u))
    g.e("v_mul_f32 v%d, v%d, v%d" % (vSC + u, Q, vPAR + u))
    g.e("v_fma_f32 v%d, -v%d, v%d, v%d" % (vSH + u, S, vSC + u, vPAR + 2 + u))
K1 = -2.0 * 0.7978845608028654 * 1.4426950408889634
K2 = K1 * 0.044715
g.e("s_mov_b32 s%d, %s" % (sT, f32(K2)))
g.e("v_mov_b32 v108, %s" % f32(K1))
vU, vP = 64, 112
for k in range(16):
    u = (k >> 2) & 1
    g.e("v_fma_f32 v%d, v%d, v%d, v%d" % (vU + k, vY + k, vSC + u, vSH + u))
for k in range(16):
    g.e("v_mul_f32 v%d, v%d, v%d" % (vP + k, vU + k, vU + k))
for k in range(16):
    g.e("v_fma_f32 v%d, v%d, s%d, v108" % (vP + k, vP + k, sT))
for k in range(16):
    g.e("v_mul_f32 v%d, v%d, v%d" % (vP + k, vP + k, vU + k))
for k in range(16):
    g.e("v_exp_f32 v%d, v%d" % (vP + k, vP + k))
for k in range(16):
    g.e("v_add_f32 v%d, 1.0, v%d" % (vP + k, vP + k))
for k in range(16):
    g.e("v_rcp_f32 v%d, v%d" % (vP + k, vP + k))
for k in range(16):
    g.e("v_mul_f32 v%d, v%d, v%d" % (vU + k, vU + k, vP + k))
vO = 128
for jj in range(2):
    for reg in range(4):
        k0 = (jj * 2 + 0) * 4 + reg
        k1 = (jj * 2 + 1) * 4 + reg
        o = vO + (jj * 4 + reg) * 2
        g.e("v_cvt_pk_bf16_f32 v%d, v%d, v%d" % (o, vU + k0, vU + k1))
g.e("s_nop 1")
for x in range(8):
    o = vO + x * 2
    g.e("v_mov_b32_dpp v%d, v%d quad_perm:[1,0,3,2] row_mask:0xf bank_mask:0xf" % (o + 1, o))
for x in range(8):
    o = vO + x * 2
    g.e("v_perm_b32 v%d, v%d, v%d, v%d" % (o, o + 1, o, vSEL))
for jj in range(2):
    for reg in range(4):
        o = vO + (jj * 4 + reg) * 2
        g.e("buffer_store_dword v%d, v%d, s[%d:%d], s%d offen offset:%d" % (o, vST, S_OUT, S_OUT + 3, sSO + reg, 512 * jj))
if STAMPS:
    g.e("s_waitcnt vmcnt(0)")
    stamp()
    g.e("s_lshl_b32 s%d, s2, 2" % sT)
    g.e("s_add_u32 s%d, s%d, s%d" % (sT, sT, sW))
    g.e("s_lshl_b32 s%d, s%d, 7" % (sT, sT))
    g.e("s_add_u32 s%d, s%d, 0x100000" % (sT, sT))
    g.e("v_mov_b32 v%d, s%d" % (vT, sT))
    g.e("s_mov_b64 exec, 1")
    for k in range(nstamp[0]):
        g.e("v_mov_b32 v%d, s%d" % (vT + 2, 80 + 2 * k))
        g.e("v_mov_b32 v%d, s%d" % (vT + 3, 81 + 2 * k))
        g.e("global_store_dwordx2 v%d, v[%d:%d], s[18:19] offset:%d" % (vT, vT + 2, vT + 3, 8 * k))
        g.e("s_nop 1")
g.label("L_end")
g.e("s_endpgm")

hdr = open("standalone__self_sup_conv_stem_hubert__speech.s.ref").read().split("; Override")[0]
text = hdr + """; @launch grid=(256,1,1) block=(256,1,1) lds=163840
.amdgcn_target "amdgcn-amd-amdhsa--gfx950"
.text
.globl {n}
.p2align 8
.type {n},@function
{n}:
{body}
.section .rodata,"a"
.p2align 6
.amdhsa_kernel {n}
  .amdhsa_next_free_vgpr {nfv}
  .amdhsa_next_free_sgpr 102
  .amdhsa_accum_offset {acc}
  .amdhsa_group_segment_fixed_size 0
  .amdhsa_kernarg_size 64
  .amdhsa_user_sgpr_count 2
  .amdhsa_user_sgpr_kernarg_segment_ptr 1
  .amdhsa_system_sgpr_workgroup_id_x 1
  .amdhsa_float_denorm_mode_32 3
.end_amdhsa_kernel
""".format(n=NAME, body="\n".join(g.lines), nfv=NV + NA, acc=NV)
open(OUT, "w").write(text)
print("wrote", OUT, "lines", len(g.lines), "stamps", nstamp[0])
```

```python
import sys, struct

STAMPS = "--stamps" in sys.argv
NOMFMA = "--nomfma" in sys.argv
NODMA = "--nodma" in sys.argv
TWICE = "--twice" in sys.argv
CYC = "--cyc" in sys.argv
def opt(name, d=""):
    for a in sys.argv:
        if a.startswith("--" + name + "="):
            return a.split("=", 1)[1].replace("+", " ")
    return d
BFLAG = opt("bflag")
AFLAG = opt("aflag")
BFULL = "--bfull" in sys.argv
HALF = opt("half", "")
NONOP = "--nonop" in sys.argv
PF = opt("pf", "0")
DBGST = "--dbgst" in sys.argv
XMAP = opt("xmap", "0")
OUT = [a for a in sys.argv[1:] if not a.startswith("--")][0]
NAME = "standalone__self_sup_conv_stem_hubert__speech_kernel"

L_OUT = 1993
WREG = 40960


def f32(x):
    return "0x%08x" % struct.unpack("<I", struct.pack("<f", x))[0]


class G:
    def __init__(self):
        self.lines = []
        self.vm = []
        self.vm_done = 0
        self.lg = []
        self.lg_done = 0

    def e(self, s):
        self.lines.append("    " + s)

    def c(self, s):
        self.lines.append("    ; " + s)

    def label(self, s):
        self.lines.append(s + ":")

    def vmop(self, s, tag=None):
        if NODMA and s.endswith(" lds"):
            self.e("s_nop 0")
            self.e("s_nop 0")
            self.skipped = getattr(self, "skipped", set()) | {tag}
            return
        self.e(s)
        self.vm.append(tag)

    def lgop(self, s, tag=None):
        self.e(s)
        self.lg.append(tag)

    def wait_vm(self, tag):
        if tag in getattr(self, "skipped", set()):
            return
        idx = max(i for i, t in enumerate(self.vm) if t == tag)
        if idx < self.vm_done:
            return
        n = len(self.vm) - 1 - idx
        assert n <= 63
        self.e("s_waitcnt vmcnt(%d)" % n)
        self.vm_done = idx + 1

    def wait_vm_all(self):
        self.e("s_waitcnt vmcnt(0)")
        self.vm_done = len(self.vm)

    def wait_lg(self, tag):
        idx = max(i for i, t in enumerate(self.lg) if t == tag)
        if idx < self.lg_done:
            return
        n = min(14, len(self.lg) - 1 - idx)
        self.e("s_waitcnt lgkmcnt(%d)" % n)
        self.lg_done = len(self.lg) - n

    def wait_lg_all(self):
        self.e("s_waitcnt lgkmcnt(0)")
        self.lg_done = len(self.lg)


g = G()
nstamp = [0]


def stamp():
    if not STAMPS:
        return
    k = nstamp[0]
    nstamp[0] += 1
    g.e("%s s[%d:%d]" % ("s_memtime" if CYC else "s_memrealtime", 80 + 2 * k, 81 + 2 * k))
    g.wait_lg_all()


S_X, S_W, S_OUT, S_WS, S_DBG = 20, 24, 28, 32, 36
sW, sLB, sXO, sT, sMT, sNT, sLT, sB, sREC, sT2, sT3 = 40, 41, 42, 43, 44, 45, 46, 47, 48, 49, 50
sSO = 52
sMASK = 60
vLANE, vN, vQ = 1, 2, 3
vOA = 4
vOB = 12
vA = 16
vB = 24
vT = 26
vW = 32
vFE = 64
NV = 184
aACC = 0
aFO = 64
NA = 176
vPAR = 184
vST = 190
vSEL = 191
vREC = 192
NV = 204


def F(s, ch):
    if s % 2 == 0:
        r = vFE + ((s // 2) * 2 + ch) * 4
        return "v[%d:%d]" % (r, r + 3)
    r = aFO + ((s // 2) * 2 + ch) * 4
    return "a[%d:%d]" % (r, r + 3)


def Wr(buf, ch, u, h=None):
    r = vW + buf * 16 + (ch * 2 + u) * 4
    if h is None:
        return "v[%d:%d]" % (r, r + 3)
    return "v[%d:%d]" % (r + 2 * h, r + 2 * h + 1)


def ACC(j, u):
    r = aACC + (j * 2 + u) * 4
    return "a[%d:%d]" % (r, r + 3)


g.e("s_cmp_ge_u32 s2, 256")
g.e("s_cbranch_scc1 L_end")
g.e("s_load_dwordx16 s[4:19], s[0:1], 0")
if STAMPS:
    g.e("s_memtime s[80:81]" if CYC else "s_memrealtime s[80:81]")
    nstamp[0] = 1
g.e("v_and_b32 v%d, 63, v0" % vLANE)
g.e("v_lshrrev_b32 v%d, 6, v0" % vT)
g.e("v_and_b32 v%d, 15, v0" % vN)
g.e("v_readfirstlane_b32 s%d, v%d" % (sW, vT))
g.e("v_bfe_u32 v%d, v0, 4, 2" % vQ)
g.e("s_and_b32 s%d, s2, 7" % sT)
g.e("s_lshr_b32 s%d, s2, 3" % sT2)
g.e("s_lshr_b32 s%d, s%d, 1" % (sMT, sT))
g.e("s_lshl_b32 s%d, s%d, 3" % (sMT, sMT))
g.e("s_lshr_b32 s%d, s%d, 2" % (sT3, sT2))
g.e("s_add_u32 s%d, s%d, s%d" % (sMT, sMT, sT3))
g.e("s_and_b32 s%d, s%d, 1" % (sNT, sT))
g.e("s_lshl_b32 s%d, s%d, 2" % (sNT, sNT))
g.e("s_and_b32 s%d, s%d, 3" % (sT3, sT2))
g.e("s_add_u32 s%d, s%d, s%d" % (sNT, sNT, sT3))
if XMAP == "1":
    g.e("s_lshl_b32 s%d, s%d, 2" % (sMT, sT))
    g.e("s_lshr_b32 s%d, s%d, 3" % (sT3, sT2))
    g.e("s_add_u32 s%d, s%d, s%d" % (sMT, sMT, sT3))
    g.e("s_and_b32 s%d, s%d, 7" % (sNT, sT2))
if XMAP == "2":
    g.e("s_and_b32 s%d, s%d, 1" % (sMT, sT))
    g.e("s_lshl_b32 s%d, s%d, 4" % (sMT, sMT))
    g.e("s_lshr_b32 s%d, s%d, 1" % (sT3, sT2))
    g.e("s_add_u32 s%d, s%d, s%d" % (sMT, sMT, sT3))
    g.e("s_and_b32 s%d, s%d, 6" % (sNT, sT))
    g.e("s_and_b32 s%d, s%d, 1" % (sT3, sT2))
    g.e("s_add_u32 s%d, s%d, s%d" % (sNT, sNT, sT3))
g.e("s_lshr_b32 s%d, s%d, 4" % (sB, sMT))
g.e("s_and_b32 s%d, s%d, 15" % (sLT, sMT))
g.e("s_mul_i32 s%d, s%d, %d" % (sLB, sW, WREG))
g.e("s_mul_i32 s%d, s%d, 2048000" % (sXO, sB))
g.e("s_lshl_b32 s%d, s%d, 17" % (sT, sLT))
g.e("s_add_u32 s%d, s%d, s%d" % (sXO, sXO, sT))
g.e("s_lshl_b32 s%d, s%d, 3" % (sT, sB))
g.e("s_add_u32 s%d, s%d, s%d" % (sT, sT, sNT))
g.e("s_lshl_b32 s%d, s%d, 12" % (sREC, sT))
g.e("s_lshl_b32 s%d, s%d, 4" % (sT3, sT))
g.e("s_mov_b32 s51, s%d" % sT3)
if DBGST:
    g.e("s_lshl_b32 s51, s%d, 2" % sT)
    g.e("s_add_u32 s51, s51, 64")
for k in range(4):
    g.e("s_mov_b32 s%d, %d" % (sSO + k, 4096 * k))

g.e("v_lshrrev_b32 v%d, 3, v%d" % (vT, vLANE))
g.e("v_lshlrev_b32 v%d, 10, v%d" % (vT, vT))
g.e("v_and_b32 v%d, 7, v%d" % (vT + 1, vLANE))
g.e("v_lshlrev_b32 v%d, 4, v%d" % (vT + 1, vT + 1))
g.e("v_or_b32 v%d, v%d, v%d" % (vT, vT, vT + 1))
g.e("s_lshl_b32 s%d, s%d, 7" % (sT, sW))
g.e("v_or_b32 v%d, s%d, v%d" % (vT, sT, vT))
for k in range(8):
    x = ((k & 1) << 10) | ((k & 6) << 4)
    g.e("v_xor_b32 v%d, 0x%x, v%d" % (vOA + k, x, vT))
    if k & 3:
        g.e("v_add_u32 v%d, %d, v%d" % (vOA + k, (k & 3) * 7168, vOA + k))
g.e("v_lshrrev_b32 v%d, 2, v%d" % (vT, vLANE))
g.e("v_lshlrev_b32 v%d, 9, v%d" % (vT, vT))
g.e("v_lshrrev_b32 v%d, 5, v%d" % (vT + 1, vLANE))
g.e("v_lshlrev_b32 v%d, 1, v%d" % (vT + 1, vT + 1))
g.e("v_and_b32 v%d, 3, v%d" % (vT + 2, vLANE))
g.e("v_xor_b32 v%d, v%d, v%d" % (vT + 1, vT + 1, vT + 2))
g.e("v_lshl_add_u32 v%d, v%d, 4, v%d" % (vT, vT + 1, vT))
g.e("s_lshl_b32 s%d, s%d, 15" % (sT, sW))
g.e("s_lshl_b32 s%d, s%d, 6" % (sT2, sNT))
g.e("s_add_u32 s%d, s%d, s%d" % (sT, sT, sT2))
g.e("v_add_u32 v%d, s%d, v%d" % (vOB, sT, vT))
if BFULL:
    g.e("v_lshrrev_b32 v%d, 3, v%d" % (vT, vLANE))
    g.e("v_lshlrev_b32 v%d, 9, v%d" % (vT, vT))
    g.e("v_and_b32 v%d, 7, v%d" % (vT + 1, vLANE))
    g.e("v_lshl_add_u32 v%d, v%d, 4, v%d" % (vT, vT + 1, vT))
    g.e("s_lshl_b32 s%d, s%d, 15" % (sT, sW))
    g.e("s_lshr_b32 s%d, s%d, 1" % (sT2, sNT))
    g.e("s_lshl_b32 s%d, s%d, 7" % (sT2, sT2))
    g.e("s_add_u32 s%d, s%d, s%d" % (sT, sT, sT2))
    g.e("s_and_b32 s%d, s%d, 1" % (sT2, sNT))
    g.e("s_lshl_b32 s%d, s%d, 12" % (sT2, sT2))
    g.e("s_add_u32 s%d, s%d, s%d" % (sT, sT, sT2))
    g.e("v_add_u32 v%d, s%d, v%d" % (vOB, sT, vT))
for be in range(1, 4):
    g.e("v_add_u32 v%d, %d, v%d" % (vOB + be, be * 7168, vOB))
for k0 in range(2):
    g.e("v_add_u32 v%d, %d, v%d" % (vT, k0, vN))
    g.e("v_and_b32 v%d, 1, v%d" % (vT + 1, vT))
    g.e("v_lshlrev_b32 v%d, 7, v%d" % (vT + 1, vT + 1))
    g.e("v_and_b32 v%d, 6, v%d" % (vT + 2, vT))
    g.e("v_xor_b32 v%d, v%d, v%d" % (vT + 2, vT + 2, vQ))
    g.e("v_lshlrev_b32 v%d, 4, v%d" % (vT + 2, vT + 2))
    g.e("v_or_b32 v%d, v%d, v%d" % (vT + 1, vT + 1, vT + 2))
    g.e("v_lshl_add_u32 v%d, v%d, 10, v%d" % (vT + 1, vT, vT + 1))
    for e1 in range(2):
        for ch in range(2):
            r = vA + (k0 * 2 + e1) * 2 + ch
            g.e("v_xor_b32 v%d, 0x%x, v%d" % (r, (e1 << 7) | (ch << 6), vT + 1))
            g.e("v_add_u32 v%d, s%d, v%d" % (r, sLB, r))
g.e("v_lshrrev_b32 v%d, 2, v%d" % (vT, vN))
g.e("v_lshl_add_u32 v%d, v%d, 3, v%d" % (vT, vQ, vT))
g.e("v_lshlrev_b32 v%d, 6, v%d" % (vT, vT))
g.e("v_and_b32 v%d, 3, v%d" % (vT + 1, vN))
g.e("v_lshl_add_u32 v%d, v%d, 3, v%d" % (vT, vT + 1, vT))
g.e("v_and_b32 v%d, 1, v%d" % (vT + 1, vQ))
g.e("v_lshl_add_u32 v%d, v%d, 5, v%d" % (vT, vT + 1, vT))
g.e("v_add_u32 v%d, s%d, v%d" % (vB, sLB, vT))
g.e("v_xor_b32 v%d, 32, v%d" % (vT, vT))
g.e("v_add_u32 v%d, s%d, v%d" % (vB + 1, sLB, vT))
g.e("s_lshl_b32 s%d, s%d, 7" % (sT, sLT))
g.e("s_lshl_b32 s%d, s%d, 1" % (sT2, sW))
g.e("s_add_u32 s%d, s%d, s%d" % (sT, sT, sT2))
g.e("s_sub_u32 s%d, %d, s%d" % (sT, L_OUT, sT))
g.e("v_lshlrev_b32 v%d, 5, v%d" % (vT, vQ))
g.e("v_sub_u32 v%d, s%d, v%d" % (vT, sT, vT))
for jj in range(2):
    for reg in range(4):
        m = sMASK + (jj * 4 + reg) * 2
        g.e("v_cmp_lt_i32 s[%d:%d], %d, v%d" % (m, m + 1, 8 * reg + jj, vT))
g.e("s_lshl_b32 s%d, s%d, 16" % (sT, sLT))
g.e("s_lshl_b32 s%d, s%d, 10" % (sT2, sW))
g.e("s_add_u32 s%d, s%d, s%d" % (sT, sT, sT2))
g.e("s_lshl_b32 s%d, s%d, 6" % (sT2, sNT))
g.e("s_add_u32 s%d, s%d, s%d" % (sT, sT, sT2))
g.e("v_and_b32 v%d, 1, v%d" % (vT, vN))
g.e("v_mul_u32_u24 v%d, 15, v%d" % (vT + 1, vT))
g.e("v_add_u32 v%d, v%d, v%d" % (vT + 1, vT + 1, vN))
g.e("v_lshlrev_b32 v%d, 1, v%d" % (vT + 1, vT + 1))
g.e("v_lshl_add_u32 v%d, v%d, 14, v%d" % (vT + 1, vQ, vT + 1))
g.e("v_add_u32 v%d, s%d, v%d" % (vST, sT, vT + 1))
g.e("v_mov_b32 v%d, 0x05040100" % vSEL)
g.e("v_mov_b32 v%d, 0x03020706" % (vT + 1))
g.e("v_cmp_eq_u32 vcc, 1, v%d" % vT)
g.e("s_nop 1")
g.e("v_cndmask_b32 v%d, v%d, v%d, vcc" % (vSEL, vSEL, vT + 1))
g.e("s_lshl_b32 s%d, s%d, 8" % (sT, sLT))
g.e("s_add_u32 s%d, s%d, s%d" % (sT, sT, sREC))
g.e("v_lshl_add_u32 v%d, v%d, 2, v%d" % (vT, vN, vQ))
g.e("v_lshlrev_b32 v%d, 2, v%d" % (vT, vT))
g.e("v_mov_b32 v%d, v%d" % (vREC + 2, vT))
g.e("v_add_u32 v%d, s%d, v%d" % (vREC, sT, vT))
g.e("s_lshl_b32 s%d, s%d, 10" % (sT, sW))
g.e("s_add_u32 s%d, s%d, s%d" % (sT, sT, sREC))
g.e("v_lshlrev_b32 v%d, 4, v%d" % (vT, vN))
g.e("v_lshl_add_u32 v%d, v%d, 8, v%d" % (vT, vQ, vT))
g.e("v_add_u32 v%d, s%d, v%d" % (vREC + 1, sT, vT))
g.e("s_lshl_b32 s%d, s%d, 6" % (sT, sNT))
g.e("v_lshlrev_b32 v%d, 1, v%d" % (vT + 2, vN))
g.e("v_add_u32 v%d, s%d, v%d" % (vT + 2, sT, vT + 2))
g.e("v_mov_b32 v%d, -1" % (vT + 3))

g.e("s_waitcnt lgkmcnt(0)")
stamp()
def srd(d, lo, size):
    g.e("s_mov_b32 s%d, s%d" % (d, lo))
    g.e("s_and_b32 s%d, s%d, 0xffff" % (d + 1, lo + 1))
    g.e("s_mov_b32 s%d, %d" % (d + 2, size))
    g.e("s_mov_b32 s%d, 0x00020000" % (d + 3))

srd(S_X, 4, 4096000)
srd(S_W, 6, 15 * 131072)
if HALF:
    g.e("s_lshr_b32 s%d, s2, 3" % sT)
    g.e("s_cmp_ge_u32 s%d, %s" % (sT, HALF))
    g.e("s_cselect_b32 s%d, 0, s%d" % (S_X + 2, S_X + 2))
    g.e("s_cselect_b32 s%d, 0, s%d" % (S_W + 2, S_W + 2))
srd(S_WS, 18, 65536)
srd(S_DBG, 16, 256)
g.e("s_mul_i32 s%d, s%d, %d" % (sT, sB, L_OUT * 512))
g.e("s_add_u32 s%d, s14, s%d" % (S_OUT, sT))
g.e("s_addc_u32 s%d, s15, 0" % (S_OUT + 1))
g.e("s_and_b32 s%d, s%d, 0xffff" % (S_OUT + 1, S_OUT + 1))
g.e("s_mov_b32 s%d, %d" % (S_OUT + 2, L_OUT * 512))
g.e("s_mov_b32 s%d, 0x00020000" % (S_OUT + 3))


def dmaA(par, slot0, kaps, inter=None):
    ops = []
    for kap in kaps:
        def f(kap=kap):
            if kap % 4 == 0 or kap == kaps[0]:
                kb = kap & ~3
                g.e("s_add_u32 m0, s%d, %d" % (sLB, (slot0 + kb) * 1024))
                g.e("s_add_u32 s%d, s%d, %d" % (sT, sXO, (16 * kb + par) * 512))
            g.vmop("buffer_load_dwordx4 v%d, s[%d:%d], s%d offen offset:%d %s lds" % (
                vOA + (kap & 7), S_X, S_X + 3, sT, (kap & 3) * 1024, AFLAG), ("A", par, kap))
        ops.append(f)
    return ops


def dmaB(i, slot0):
    ops = []
    for be in range(4):
        def f(be=be):
            if be == 0:
                g.e("s_add_u32 m0, s%d, %d" % (sLB, slot0 * 1024))
                g.e("s_mov_b32 s%d, %d" % (sT2, i * 131072))
            g.vmop("buffer_load_dwordx4 v%d, s[%d:%d], s%d offen offset:%d %s lds" % (
                vOB + be, S_W, S_W + 3, sT2, be * 1024, BFLAG), ("B", i, be))
        ops.append(f)
    return ops


def rdF(s, ch, slot0):
    par, e, k0 = s & 1, (s & 15) >> 1, s >> 4
    def f():
        g.lgop("ds_read_b128 %s, v%d offset:%d" % (F(s, ch), vA + (k0 * 2 + (e & 1)) * 2 + ch,
                                                   slot0 * 1024 + (e >> 1) * 256), ("F", s, ch))
    return f


def rdW(i, buf, ch, u, h, slot0):
    def f():
        g.lgop("ds_read_b64_tr_b16 %s, v%d offset:%d" % (Wr(buf, ch, u, h), vB + u,
                                                         slot0 * 1024 + ch * 2048 + h * 256), ("W", i, ch, u, h))
    return f


taps = [0, 2, 4, 6, 8, 10, 12, 14, 1, 3, 5, 7, 9, 11, 13]
BSLOT = [17, 21, 25, 29, 33]
ASLOT = 0

g.e("s_cmp_lg_u32 s%d, 0" % sW)
g.e("s_cbranch_scc1 L_noinv")
g.e("buffer_atomic_swap v%d, v%d, s[%d:%d], 0 offen sc0 sc1" % (vT + 3, vREC, S_WS, S_WS + 3))
g.label("L_noinv")
for k, base in enumerate((10, 12, 8)):
    g.vmop("global_load_ushort v%d, v%d, s[%d:%d]" % (vPAR + 2 * k, vT + 2, base, base + 1), "P")
    g.vmop("global_load_ushort v%d, v%d, s[%d:%d] offset:32" % (vPAR + 2 * k + 1, vT + 2, base, base + 1), "P")

if PF == "2" or PF == "3":
    vp = 196
    g.e("s_lshr_b32 s%d, s2, 3" % sT)
    g.e("s_lshl_b32 s%d, s%d, 2" % (sT, sT))
    g.e("s_add_u32 s%d, s%d, s%d" % (sT, sT, sW))
    g.e("s_mul_i32 s%d, s%d, 60" % (sT2, sT))
    g.e("v_min_u32 v%d, 59, v%d" % (vp, vLANE))
    g.e("v_add_u32 v%d, s%d, v%d" % (vp, sT2, vp))
    g.e("v_lshrrev_b32 v%d, 1, v%d" % (vp + 1, vp))
    g.e("v_and_b32 v%d, 1, v%d" % (vp, vp))
    g.e("v_lshlrev_b32 v%d, 7, v%d" % (vp, vp))
    g.e("v_lshl_add_u32 v%d, v%d, 9, v%d" % (vp, vp + 1, vp))
    g.e("s_lshr_b32 s%d, s%d, 2" % (sT2, sNT))
    g.e("s_lshl_b32 s%d, s%d, 8" % (sT2, sT2))
    g.vmop("buffer_load_dword v%d, v%d, s[%d:%d], s%d offen" % (vp + 4, vp, S_W, S_W + 3, sT2), "PF")
    g.e("s_lshr_b32 s%d, s%d, 3" % (sT2, sLT))
    g.e("s_lshl_b32 s%d, s%d, 20" % (sT2, sT2))
    g.e("s_mul_i32 s%d, s%d, 2048000" % (sT3, sB))
    g.e("s_add_u32 s%d, s%d, s%d" % (sT2, sT2, sT3))
    g.e("s_lshl_b32 s%d, s%d, 13" % (sT3, sT))
    g.e("s_add_u32 s%d, s%d, s%d" % (sT2, sT2, sT3))
    g.e("v_lshlrev_b32 v%d, 7, v%d" % (vp + 1, vLANE))
    g.vmop("buffer_load_dword v%d, v%d, s[%d:%d], s%d offen" % (vp + 5, vp + 1, S_X, S_X + 3, sT2), "PF")
    if PF == "2":
        g.wait_vm_all()
        g.e("s_memrealtime s[82:83]")
        g.wait_lg_all()
if TWICE:
    g.e("s_mov_b32 s56, 0")
    g.label("L_again")
for f in dmaB(taps[0], BSLOT[0]):
    f()
for f in dmaA(0, ASLOT, list(range(17))):
    f()
for t in range(1, 5):
    for f in dmaB(taps[t], BSLOT[t]):
        f()

if PF == "1":
    vp = 196
    g.e("s_lshr_b32 s%d, s2, 3" % sT)
    g.e("s_lshl_b32 s%d, s%d, 2" % (sT, sT))
    g.e("s_add_u32 s%d, s%d, s%d" % (sT, sT, sW))
    g.e("s_mul_i32 s%d, s%d, 40" % (sT, sT))
    g.e("v_min_u32 v%d, 39, v%d" % (vp, vLANE))
    g.e("v_add_u32 v%d, s%d, v%d" % (vp, sT, vp))
    g.e("v_lshrrev_b32 v%d, 9, v%d" % (vp + 1, vp))
    g.e("v_lshlrev_b32 v%d, 1, v%d" % (vp + 2, vp + 1))
    g.e("v_add_u32 v%d, 10, v%d" % (vp + 3, vp + 2))
    g.e("v_subrev_u32 v%d, 5, v%d" % (vp + 2, vp + 2))
    g.e("v_cmp_gt_u32 vcc, 3, v%d" % (vp + 1))
    g.e("v_and_b32 v%d, 511, v%d" % (vp, vp))
    g.e("v_cndmask_b32 v%d, v%d, v%d, vcc" % (vp + 2, vp + 2, vp + 3))
    g.e("v_lshrrev_b32 v%d, 1, v%d" % (vp + 1, vp))
    g.e("v_and_b32 v%d, 1, v%d" % (vp, vp))
    g.e("v_lshlrev_b32 v%d, 7, v%d" % (vp, vp))
    g.e("v_lshl_add_u32 v%d, v%d, 9, v%d" % (vp, vp + 1, vp))
    g.e("v_lshl_add_u32 v%d, v%d, 17, v%d" % (vp, vp + 2, vp))
    g.e("s_lshr_b32 s%d, s%d, 2" % (sT, sNT))
    g.e("s_lshl_b32 s%d, s%d, 8" % (sT, sT))
    g.vmop("buffer_load_dword v%d, v%d, s[%d:%d], s%d offen" % (vp + 4, vp, S_W, S_W + 3, sT), "PF")
    g.e("v_min_u32 v%d, 33, v%d" % (vp + 1, vLANE))
    g.e("s_mul_i32 s%d, s%d, 34" % (sT, sW))
    g.e("v_add_u32 v%d, s%d, v%d" % (vp + 1, sT, vp + 1))
    g.e("v_lshlrev_b32 v%d, 10, v%d" % (vp + 1, vp + 1))
    g.e("s_and_b32 s%d, s%d, 3" % (sT, sNT))
    g.e("s_lshl_b32 s%d, s%d, 7" % (sT, sT))
    g.e("s_add_u32 s%d, s%d, s%d" % (sT, sT, sXO))
    g.vmop("buffer_load_dword v%d, v%d, s[%d:%d], s%d offen offset:512" % (vp + 5, vp + 1, S_X, S_X + 3, sT), "PF")
g.wait_vm(("A", 0, 16))
stamp()
g.e("s_cmp_lg_u32 s%d, 0" % sW)
g.e("s_cbranch_scc1 L_nosig")
g.e("v_mov_b32 v%d, 1" % vT)
g.e("v_mov_b32 v%d, s51" % (vT + 1))
g.e("s_mov_b64 exec, 1")
g.e("buffer_atomic_add v%d, v%d, s[%d:%d], 0 offen sc1" % (vT, vT + 1, S_DBG, S_DBG + 3))
g.e("s_mov_b64 exec, -1")
g.e("s_branch L_sigdone")
g.label("L_nosig")
g.e("global_load_ushort v%d, v%d, s[8:9]" % (vT, vT + 2))
g.label("L_sigdone")
g.vm.append("SIG")

pre = []
for u in range(2):
    for h in range(2):
        pre.append(rdW(taps[0], 0, 0, u, h, BSLOT[0]))
for s in range(0, 16, 2):
    pre.append(rdF(s, 0, ASLOT))
for f in pre:
    f()
rest = []
for u in range(2):
    for h in range(2):
        rest.append(rdW(taps[0], 0, 1, u, h, BSLOT[0]))
for s in range(0, 16, 2):
    rest.append(rdF(s, 1, ASLOT))
for s in range(16, 30, 2):
    rest.append(rdF(s, 0, ASLOT))
    rest.append(rdF(s, 1, ASLOT))

first_use = set()


def mfma(j, u, i, ch, buf):
    s = 2 * j + i
    g.wait_lg(("F", s, ch))
    g.wait_lg(("W", i, ch, u, 1))
    c = ACC(j, u) if (j, u) in first_use else "0"
    first_use.add((j, u))
    if NOMFMA and c != "0":
        if not NONOP:
            g.e("s_nop 0")
            g.e("s_nop 0")
        return
    g.e("v_mfma_f32_16x16x32_bf16 %s, %s, %s, %s" % (ACC(j, u), F(s, ch), Wr(buf, ch, u), c))


for t, i in enumerate(taps):
    buf = t & 1
    g.c("---- tap %d ----" % i)
    extra = {}

    def add(pos, f):
        extra.setdefault(pos, []).append(f)

    if t == 0:
        for k, f in enumerate(rest):
            add(k, f)
        nxt = taps[1]
        add(26, lambda nxt=nxt: g.wait_vm(("B", nxt, 3)))
        k = 26
        for ch in range(2):
            for u in range(2):
                for h in range(2):
                    add(min(31, k), rdW(nxt, 1, ch, u, h, BSLOT[1]))
                    k += 1
    else:
        pos = 1
        if t == 1:
            add(0, lambda: g.wait_lg_all())
            for f in dmaA(1, ASLOT, list(range(17))):
                add(pos, f)
                pos += 1
            for f in dmaB(taps[5], BSLOT[0]):
                add(pos, f)
                pos += 1
        if t + 5 < len(taps):
            p0 = max(pos, 17)
            ops = dmaB(taps[t + 5], BSLOT[t % 5])
            add(p0, lambda i=i: g.wait_lg(("W", i, 1, 1, 1)))
            for k, f in enumerate(ops):
                add(p0 + k, f)
        if t + 1 < len(taps):
            nxt = taps[t + 1]
            p = 8 if t != 1 else 22
            add(p, lambda nxt=nxt: g.wait_vm(("B", nxt, 3)))
            k = p
            for ch in range(2):
                for u in range(2):
                    for h in range(2):
                        add(k, rdW(nxt, (t + 1) & 1, ch, u, h, BSLOT[(t + 1) % 5]))
                        k += 1
        if t in (5, 6):
            ss = [s for s in range(1, 28, 2)]
            ss = ss[:7] if t == 5 else ss[7:]
            k = 16
            add(k, lambda: g.wait_vm(("A", 1, 16)))
            for s in ss:
                for ch in range(2):
                    add(k, rdF(s, ch, ASLOT))
                    k += 1
    n = 0
    for ch in range(2):
        for j in range(8):
            for u in range(2):
                for f in extra.get(n, []):
                    f()
                mfma(j, u, i, ch, buf)
                n += 1
    for p in extra:
        assert p < 32, p

stamp()
if TWICE:
    g.e("s_cmp_eq_u32 s56, 1")
    g.e("s_cbranch_scc1 L_twice_done")
    g.e("s_mov_b32 s56, 1")
    g.e("s_mov_b64 s[96:97], s[84:85]")
    g.e("s_mov_b64 s[98:99], s[86:87]")
    g.e("s_waitcnt vmcnt(0) lgkmcnt(0)")
    g.e("s_branch L_again")
    g.label("L_twice_done")
g.c("---- K reduction across waves ----")
vY = 32
vR = 64
vAW, vAR, vAR2 = 26, 27, 28
g.e("v_lshlrev_b32 v%d, 4, v%d" % (vT + 3, vLANE))
g.e("v_add_u32 v%d, s%d, v%d" % (vAW, sLB, vT + 3))
g.e("s_lshl_b32 s%d, s%d, 12" % (sT, sW))
g.e("v_add_u32 v%d, s%d, v%d" % (vAR, sT, vT + 3))
g.e("v_add_u32 v%d, %d, v%d" % (vAR2, 2 * WREG, vAR))
g.e("v_mov_b32 v%d, s51" % (vT + 4))
g.e("s_nop 4")
for j in range(8):
    for u in range(2):
        g.lgop("ds_write_b128 v%d, %s offset:%d" % (vAW, ACC(j, u), (j * 2 + u) * 1024))
g.vmop("buffer_load_dword v%d, v%d, s[%d:%d], 0 offen sc1" % (vT + 5, vT + 4, S_DBG, S_DBG + 3), "CNT")
g.wait_lg_all()
g.e("s_barrier")
for src in range(4):
    for blk in range(4):
        r = vR + (src * 4 + blk) * 4
        g.lgop("ds_read_b128 v[%d:%d], v%d offset:%d" % (r, r + 3, vAR if src < 2 else vAR2,
                                                         (src & 1) * WREG + blk * 1024), ("R", src, blk))
        if src == 3 and blk == 2:
            pass
for blk in range(4):
    g.wait_lg(("R", 1, blk))
    for k in range(4):
        g.e("v_add_f32 v%d, v%d, v%d" % (vY + blk * 4 + k, vR + blk * 4 + k, vR + 16 + blk * 4 + k))
for blk in range(4):
    g.wait_lg(("R", 3, blk))
    for k in range(4):
        g.e("v_add_f32 v%d, v%d, v%d" % (vR + 32 + blk * 4 + k, vR + 32 + blk * 4 + k, vR + 48 + blk * 4 + k))
for k in range(16):
    g.e("v_add_f32 v%d, v%d, v%d" % (vY + k, vY + k, vR + 32 + k))
stamp()
g.c("---- per-wave statistics ----")
vM = 64
for jj in range(2):
    for u in range(2):
        for reg in range(4):
            m = sMASK + (jj * 4 + reg) * 2
            k = (jj * 2 + u) * 4 + reg
            g.e("v_cndmask_b32 v%d, 0, v%d, s[%d:%d]" % (vM + k, vY + k, m, m + 1))
vS0, vS1, vQ0, vQ1 = 80, 81, 82, 83
for u, (vs, vq) in enumerate(((vS0, vQ0), (vS1, vQ1))):
    ks = [(jj * 2 + u) * 4 + reg for jj in range(2) for reg in range(4)]
    g.e("v_add_f32 v%d, v%d, v%d" % (vs, vM + ks[0], vM + ks[1]))
    g.e("v_mul_f32 v%d, v%d, v%d" % (vq, vM + ks[0], vM + ks[0]))
    g.e("v_fmac_f32 v%d, v%d, v%d" % (vq, vM + ks[1], vM + ks[1]))
    for k in ks[2:]:
        g.e("v_add_f32 v%d, v%d, v%d" % (vs, vs, vM + k))
        g.e("v_fmac_f32 v%d, v%d, v%d" % (vq, vM + k, vM + k))


def rowreduce(a, b, c, d):
    g.e("s_nop 1")
    g.e("v_permlane32_swap_b32 v%d, v%d" % (a, b))
    g.e("v_permlane32_swap_b32 v%d, v%d" % (c, d))
    g.e("s_nop 1")
    g.e("v_add_f32 v%d, v%d, v%d" % (a, a, b))
    g.e("v_add_f32 v%d, v%d, v%d" % (c, c, d))
    g.e("s_nop 1")
    g.e("v_permlane16_swap_b32 v%d, v%d" % (a, c))
    g.e("s_nop 1")
    g.e("v_add_f32 v%d, v%d, v%d" % (a, a, c))


rowreduce(vS0, vS1, vQ0, vQ1)
STAT1 = 20480
STAT2 = 24576
g.e("s_lshl_b32 s%d, s%d, 8" % (sT, sW))
g.e("v_add_u32 v%d, s%d, v%d" % (vT, sT, vREC + 2))
g.lgop("ds_write_b32 v%d, v%d offset:%d" % (vT, vS0, STAT1))
g.wait_lg_all()
g.e("s_barrier")
g.e("s_cmp_lg_u32 s%d, 0" % sW)
g.e("s_cbranch_scc1 L_nopub")
for k in range(4):
    g.e("ds_read_b32 v%d, v%d offset:%d" % (84 + k, vREC + 2, STAT1 + 256 * k))
g.e("s_waitcnt lgkmcnt(0)")
g.e("v_add_f32 v84, v84, v85")
g.e("v_add_f32 v86, v86, v87")
g.e("v_add_f32 v84, v84, v86")
g.e("v_min_u32 v84, 0xfffffffe, v84")
g.e("buffer_store_dword v84, v%d, s[%d:%d], 0 offen sc0 sc1" % (vREC, S_WS, S_WS + 3))
g.label("L_nopub")
stamp()
g.c("---- wait until all 16 records of the group were invalidated this launch ----")
g.e("s_mov_b32 s%d, 0" % sT3)
g.label("L_cnt")
g.e("s_waitcnt vmcnt(0)")
g.e("v_readfirstlane_b32 s%d, v%d" % (sT, vT + 5))
g.e("s_cmp_ge_u32 s%d, 16" % sT)
g.e("s_cbranch_scc1 L_cntok")
g.e("s_add_u32 s%d, s%d, 1" % (sT3, sT3))
g.e("s_cmp_ge_u32 s%d, 0x100000" % sT3)
g.e("s_cbranch_scc1 L_cntok")
g.e("buffer_load_dword v%d, v%d, s[%d:%d], 0 offen sc1" % (vT + 5, vT + 4, S_DBG, S_DBG + 3))
g.e("s_branch L_cnt")
g.label("L_cntok")
g.c("---- gather ----")
g.label("L_poll")
g.e("buffer_load_dwordx4 v[84:87], v%d, s[%d:%d], 0 offen sc0 sc1" % (vREC + 1, S_WS, S_WS + 3))
g.e("s_add_u32 s%d, s%d, 1" % (sT3, sT3))
g.e("s_waitcnt vmcnt(0)")
g.e("v_max3_u32 v88, v84, v85, v86")
g.e("v_max_u32 v88, v88, v87")
g.e("v_cmp_eq_u32 vcc, -1, v88")
g.e("s_cmp_ge_u32 s%d, 0x100000" % sT3)
g.e("s_cbranch_scc1 L_pollok")
g.e("s_cbranch_vccnz L_poll")
g.label("L_pollok")
stamp()
rowreduce(84, 86, 85, 87)
g.e("ds_write_b32 v%d, v84 offset:%d" % (vT, STAT2))
g.e("v_lshlrev_b32 v%d, 4, v%d" % (vT + 1, vN))
g.e("s_waitcnt lgkmcnt(0)")
g.e("s_barrier")
for k in range(4):
    g.e("ds_read_b128 v[%d:%d], v%d offset:%d" % (88 + 4 * k, 91 + 4 * k, vT + 1, STAT2 + 256 * k))
for k in range(6):
    g.e("v_lshlrev_b32 v%d, 16, v%d" % (vPAR + k, vPAR + k))
g.e("s_waitcnt lgkmcnt(0)")
for k in range(4):
    g.e("v_add_f32 v%d, v%d, v%d" % (88 + k, 88 + k, 92 + k))
    g.e("v_add_f32 v%d, v%d, v%d" % (96 + k, 96 + k, 100 + k))
for k in range(4):
    g.e("v_add_f32 v%d, v%d, v%d" % (88 + k, 88 + k, 96 + k))
g.e("s_mov_b32 s%d, %s" % (sT, f32(1.0 / L_OUT)))
g.e("s_mov_b32 s%d, %s" % (sT2, f32(1e-5)))
vSC, vSH = 104, 106
for u in range(2):
    S, Q = 88 + 2 * u, 89 + 2 * u
    g.e("v_mul_f32 v%d, s%d, v%d" % (S, sT, S))
    g.e("v_mul_f32 v%d, s%d, v%d" % (Q, sT, Q))
    g.e("v_fma_f32 v%d, -v%d, v%d, v%d" % (Q, S, S, Q))
    g.e("v_max_f32 v%d, 0, v%d" % (Q, Q))
    g.e("v_add_f32 v%d, s%d, v%d" % (Q, sT2, Q))
    g.e("v_rsq_f32 v%d, v%d" % (Q, Q))
    g.e("v_add_f32 v%d, v%d, v%d" % (S, S, vPAR + 4 + u))
    g.e("v_sub_f32 v%d, v%d, v%d" % (S, S, vPAR + 4 + u))
    g.e("v_mul_f32 v%d, v%d, v%d" % (vSC + u, Q, vPAR + u))
    g.e("v_fma_f32 v%d, -v%d, v%d, v%d" % (vSH + u, S, vSC + u, vPAR + 2 + u))
K1 = -2.0 * 0.7978845608028654 * 1.4426950408889634
K2 = K1 * 0.044715
g.e("s_mov_b32 s%d, %s" % (sT, f32(K2)))
g.e("v_mov_b32 v108, %s" % f32(K1))
vU, vP = 64, 112
for k in range(16):
    u = (k >> 2) & 1
    g.e("v_fma_f32 v%d, v%d, v%d, v%d" % (vU + k, vY + k, vSC + u, vSH + u))
for k in range(16):
    g.e("v_mul_f32 v%d, v%d, v%d" % (vP + k, vU + k, vU + k))
for k in range(16):
    g.e("v_fma_f32 v%d, v%d, s%d, v108" % (vP + k, vP + k, sT))
for k in range(16):
    g.e("v_mul_f32 v%d, v%d, v%d" % (vP + k, vP + k, vU + k))
for k in range(16):
    g.e("v_exp_f32 v%d, v%d" % (vP + k, vP + k))
for k in range(16):
    g.e("v_add_f32 v%d, 1.0, v%d" % (vP + k, vP + k))
for k in range(16):
    g.e("v_rcp_f32 v%d, v%d" % (vP + k, vP + k))
for k in range(16):
    g.e("v_mul_f32 v%d, v%d, v%d" % (vU + k, vU + k, vP + k))
vO = 128
for jj in range(2):
    for reg in range(4):
        k0 = (jj * 2 + 0) * 4 + reg
        k1 = (jj * 2 + 1) * 4 + reg
        o = vO + (jj * 4 + reg) * 2
        g.e("v_cvt_pk_bf16_f32 v%d, v%d, v%d" % (o, vU + k0, vU + k1))
g.e("s_nop 1")
for x in range(8):
    o = vO + x * 2
    g.e("v_mov_b32_dpp v%d, v%d quad_perm:[1,0,3,2] row_mask:0xf bank_mask:0xf" % (o + 1, o))
for x in range(8):
    o = vO + x * 2
    g.e("v_perm_b32 v%d, v%d, v%d, v%d" % (o, o + 1, o, vSEL))
for jj in range(2):
    for reg in range(4):
        o = vO + (jj * 4 + reg) * 2
        g.e("buffer_store_dword v%d, v%d, s[%d:%d], s%d offen offset:%d" % (o, vST, S_OUT, S_OUT + 3, sSO + reg, 512 * jj))
if STAMPS:
    g.e("s_waitcnt vmcnt(0)")
    stamp()
    if DBGST:
        g.e("s_mov_b64 exec, 1")
        g.e("v_mov_b32 v%d, 0" % vT)
        for k in range(8):
            g.e("v_mov_b32 v%d, s%d" % (vT + 2, 80 + 2 * k))
            g.e("v_not_b32 v%d, v%d" % (vT + 3, vT + 2))
            g.e("buffer_atomic_umax v%d, v%d, s[%d:%d], 0 offen offset:%d sc1" % (vT + 2, vT, S_DBG, S_DBG + 3, 4 * k))
            g.e("buffer_atomic_umax v%d, v%d, s[%d:%d], 0 offen offset:%d sc1" % (vT + 3, vT, S_DBG, S_DBG + 3, 32 + 4 * k))
            g.e("s_nop 1")
        g.e("s_endpgm")
    g.e("s_lshl_b32 s%d, s2, 2" % sT)
    g.e("s_add_u32 s%d, s%d, s%d" % (sT, sT, sW))
    g.e("s_lshl_b32 s%d, s%d, 7" % (sT, sT))
    g.e("s_add_u32 s%d, s%d, 0x100000" % (sT, sT))
    g.e("v_mov_b32 v%d, s%d" % (vT, sT))
    g.e("s_mov_b64 exec, 1")
    for k in range(nstamp[0] + (2 if TWICE else 0)):
        g.e("v_mov_b32 v%d, s%d" % (vT + 2, 80 + 2 * k))
        g.e("v_mov_b32 v%d, s%d" % (vT + 3, 81 + 2 * k))
        g.e("global_store_dwordx2 v%d, v[%d:%d], s[18:19] offset:%d" % (vT, vT + 2, vT + 3, 8 * k))
        g.e("s_nop 1")
g.label("L_end")
g.e("s_endpgm")

hdr = open("standalone__self_sup_conv_stem_hubert__speech.s.ref").read().split("; Override")[0]
text = hdr + """; @launch grid=(256,1,1) block=(256,1,1) lds=163840
.amdgcn_target "amdgcn-amd-amdhsa--gfx950"
.text
.globl {n}
.p2align 8
.type {n},@function
{n}:
{body}
.section .rodata,"a"
.p2align 6
.amdhsa_kernel {n}
  .amdhsa_next_free_vgpr {nfv}
  .amdhsa_next_free_sgpr 102
  .amdhsa_accum_offset {acc}
  .amdhsa_group_segment_fixed_size 0
  .amdhsa_kernarg_size 64
  .amdhsa_user_sgpr_count 2
  .amdhsa_user_sgpr_kernarg_segment_ptr 1
  .amdhsa_system_sgpr_workgroup_id_x 1
  .amdhsa_float_denorm_mode_32 3
.end_amdhsa_kernel
""".format(n=NAME, body="\n".join(g.lines), nfv=NV + NA, acc=NV)
open(OUT, "w").write(text)
print("wrote", OUT, "lines", len(g.lines), "stamps", nstamp[0])
```

```python
import sys, struct, copy


def opt(name, d=""):
    for a in sys.argv:
        if a.startswith("--" + name + "="):
            return a.split("=", 1)[1].replace("+", " ")
    return d


STAMPS = "--stamps" in sys.argv
TAPST = "--tapst" in sys.argv
CYC = "--cyc" in sys.argv
NVAR = int(opt("nvar", "8"))
ROTA = opt("rota", "1") == "1"
CONTIG = "--contig" in sys.argv
OUT = [a for a in sys.argv[1:] if not a.startswith("--")][0]
NAME = "standalone__self_sup_conv_stem_hubert__speech_kernel"
PRO = opt("pro", "B0,A,B1,B2").split(",")
SCHED = opt("sched", "B3|B4,O0-3|B5,O4-7|B6,O8-11|B7,O12-16|B8|B9|B10|B11|B12|B13|B14|||").split("|")
FODD = [int(x) for x in opt("fodd", "6,7").split(",")]
WPOS = int(opt("wpos", "14"))

L_OUT = 1993
WREG = 40960


def f32(x):
    return "0x%08x" % struct.unpack("<I", struct.pack("<f", x))[0]


class G:
    def __init__(self):
        self.lines = []
        self.vm = []
        self.vm_done = 0
        self.lg = []
        self.lg_done = 0

    def e(self, s):
        self.lines.append("    " + s)

    def c(self, s):
        self.lines.append("    ; " + s)

    def label(self, s):
        self.lines.append(s + ":")

    def vmop(self, s, tag=None):
        self.e(s)
        self.vm.append(tag)

    def lgop(self, s, tag=None):
        self.e(s)
        self.lg.append(tag)

    def wait_vm(self, tag):
        idx = max(i for i, t in enumerate(self.vm) if t == tag)
        if idx < self.vm_done:
            return
        n = len(self.vm) - 1 - idx
        assert n <= 62
        self.e("s_waitcnt vmcnt(%d)" % n)
        self.vm_done = idx + 1

    def wait_vm_all(self):
        self.e("s_waitcnt vmcnt(0)")
        self.vm_done = len(self.vm)

    def wait_lg(self, tag):
        idx = max(i for i, t in enumerate(self.lg) if t == tag)
        if idx < self.lg_done:
            return
        n = min(14, len(self.lg) - 1 - idx)
        self.e("s_waitcnt lgkmcnt(%d)" % n)
        self.lg_done = len(self.lg) - n

    def wait_lg_all(self):
        self.e("s_waitcnt lgkmcnt(0)")
        self.lg_done = len(self.lg)

    def save(self):
        return (list(self.vm), self.vm_done, list(self.lg), self.lg_done)

    def restore(self, st):
        self.vm, self.vm_done, self.lg, self.lg_done = list(st[0]), st[1], list(st[2]), st[3]


g = G()
vSTAMP = 205


def stamp(k):
    if not STAMPS:
        return
    g.e("%s s[%d:%d]" % ("s_memtime" if CYC else "s_memrealtime", 80 + 2 * k, 81 + 2 * k))
    g.wait_lg_all()


S_X, S_W, S_OUT, S_WS, S_DBG = 20, 24, 28, 32, 36
sW, sLB, sXO, sT, sMT, sNT, sLT, sB, sREC, sT2, sT3, sCNT = 40, 41, 42, 43, 44, 45, 46, 47, 48, 49, 50, 51
sSO = 52
sROT = 56
sU, sU2 = 57, 58
sMASK = 60
vLANE, vN, vQ = 1, 2, 3
vOA = 4
vOB = 12
vA = 16
vB = 24
vT = 26
vW = 32
vFE = 64
vPAR = 184
vST = 190
vSEL = 191
vREC = 192
vOA16 = 195
vAW = 196
vAR = 197
vCNTO = 200
vCNT = 201
vSTW = 202
vSTR = 203
NV = 208
aACC = 0
aFO = 64
NA = 176


def F(s, ch):
    if s % 2 == 0:
        r = vFE + ((s // 2) * 2 + ch) * 4
        return "v[%d:%d]" % (r, r + 3)
    r = aFO + ((s // 2) * 2 + ch) * 4
    return "a[%d:%d]" % (r, r + 3)


def Wr(buf, ch, u, h=None):
    r = vW + buf * 16 + (ch * 2 + u) * 4
    if h is None:
        return "v[%d:%d]" % (r, r + 3)
    return "v[%d:%d]" % (r + 2 * h, r + 2 * h + 1)


def ACC(j, u):
    r = aACC + (j * 2 + u) * 4
    return "a[%d:%d]" % (r, r + 3)


g.e("s_cmp_ge_u32 s2, 256")
g.e("s_cbranch_scc1 L_end")
g.e("s_load_dwordx16 s[4:19], s[0:1], 0")
if STAMPS:
    g.e("s_memtime s[80:81]" if CYC else "s_memrealtime s[80:81]")
g.e("v_and_b32 v%d, 63, v0" % vLANE)
g.e("v_lshrrev_b32 v%d, 6, v0" % vT)
g.e("v_and_b32 v%d, 15, v0" % vN)
g.e("v_readfirstlane_b32 s%d, v%d" % (sW, vT))
g.e("v_bfe_u32 v%d, v0, 4, 2" % vQ)
g.e("s_and_b32 s%d, s2, 7" % sT)
g.e("s_lshr_b32 s%d, s2, 3" % sT2)
g.e("s_lshr_b32 s%d, s%d, 1" % (sMT, sT))
g.e("s_lshl_b32 s%d, s%d, 3" % (sMT, sMT))
g.e("s_lshr_b32 s%d, s%d, 2" % (sT3, sT2))
g.e("s_add_u32 s%d, s%d, s%d" % (sMT, sMT, sT3))
g.e("s_and_b32 s%d, s%d, 1" % (sNT, sT))
g.e("s_lshl_b32 s%d, s%d, 2" % (sNT, sNT))
g.e("s_and_b32 s%d, s%d, 3" % (sROT, sT2))
g.e("s_add_u32 s%d, s%d, s%d" % (sNT, sNT, sROT))
if not ROTA:
    g.e("s_mov_b32 s%d, 0" % sROT)
g.e("s_lshr_b32 s%d, s%d, 4" % (sB, sMT))
g.e("s_and_b32 s%d, s%d, 15" % (sLT, sMT))
g.e("s_mul_i32 s%d, s%d, %d" % (sLB, sW, WREG))
g.e("s_mul_i32 s%d, s%d, 2048000" % (sXO, sB))
g.e("s_lshl_b32 s%d, s%d, 17" % (sT, sLT))
g.e("s_add_u32 s%d, s%d, s%d" % (sXO, sXO, sT))
g.e("s_lshl_b32 s%d, s%d, 3" % (sT, sB))
g.e("s_add_u32 s%d, s%d, s%d" % (sT, sT, sNT))
g.e("s_lshl_b32 s%d, s%d, 12" % (sREC, sT))
g.e("s_lshl_b32 s%d, s%d, 4" % (sCNT, sT))
for k in range(4):
    g.e("s_mov_b32 s%d, %d" % (sSO + k, 4096 * k))

g.e("v_lshrrev_b32 v%d, 3, v%d" % (vT, vLANE))
g.e("v_lshlrev_b32 v%d, %d, v%d" % (vT, 9 if CONTIG else 10, vT))
g.e("v_and_b32 v%d, 7, v%d" % (vT + 1, vLANE))
g.e("v_lshlrev_b32 v%d, 4, v%d" % (vT + 1, vT + 1))
g.e("v_or_b32 v%d, v%d, v%d" % (vT, vT, vT + 1))
g.e("s_lshl_b32 s%d, s%d, 7" % (sT, sW))
g.e("v_or_b32 v%d, s%d, v%d" % (vOA16, sT, vT))
g.e("s_and_b32 s%d, s%d, 1" % (sT, sROT))
g.e("s_lshl_b32 s%d, s%d, 6" % (sT, sT))
g.e("v_xor_b32 v%d, s%d, v%d" % (vT, sT, vOA16))
for k in range(8):
    x = ((k & 1) << 10) | ((k & 6) << 4)
    g.e("v_xor_b32 v%d, 0x%x, v%d" % (vOA + k, x, vT))
    if k & 3:
        g.e("v_add_u32 v%d, %d, v%d" % (vOA + k, (k & 3) * (3072 if CONTIG else 7168), vOA + k))
g.e("v_lshrrev_b32 v%d, 2, v%d" % (vT, vLANE))
g.e("v_lshlrev_b32 v%d, 9, v%d" % (vT, vT))
g.e("v_lshrrev_b32 v%d, 5, v%d" % (vT + 1, vLANE))
g.e("v_lshlrev_b32 v%d, 1, v%d" % (vT + 1, vT + 1))
g.e("v_and_b32 v%d, 3, v%d" % (vT + 2, vLANE))
g.e("v_xor_b32 v%d, v%d, v%d" % (vT + 1, vT + 1, vT + 2))
g.e("v_lshl_add_u32 v%d, v%d, 4, v%d" % (vT, vT + 1, vT))
g.e("s_lshl_b32 s%d, s%d, 15" % (sT, sW))
g.e("s_lshl_b32 s%d, s%d, 6" % (sT2, sNT))
g.e("s_add_u32 s%d, s%d, s%d" % (sT, sT, sT2))
g.e("v_add_u32 v%d, s%d, v%d" % (vOB, sT, vT))
for be in range(1, 4):
    g.e("v_add_u32 v%d, %d, v%d" % (vOB + be, be * 7168, vOB))
g.e("s_lshl_b32 s%d, s%d, 8" % (sT, sLT))
g.e("s_add_u32 s%d, s%d, s%d" % (sT, sT, sREC))
g.e("v_lshl_add_u32 v%d, v%d, 2, v%d" % (vT, vN, vQ))
g.e("v_lshlrev_b32 v%d, 2, v%d" % (vREC + 2, vT))
g.e("v_add_u32 v%d, s%d, v%d" % (vREC, sT, vREC + 2))
g.e("s_lshl_b32 s%d, s%d, 6" % (sT, sNT))
g.e("v_lshlrev_b32 v%d, 1, v%d" % (vT + 2, vN))
g.e("v_add_u32 v%d, s%d, v%d" % (vT + 2, sT, vT + 2))
g.e("v_mov_b32 v%d, -1" % (vT + 3))
g.e("v_mov_b32 v%d, s%d" % (vCNTO, sCNT))


def late_setup():
    t0 = vT + 4
    a, b, c = vT + 4, vT + 5, vCNT
    for k0 in range(2):
        g.e("v_add_u32 v%d, %d, v%d" % (a, k0, vN))
        g.e("v_and_b32 v%d, 1, v%d" % (b, a))
        g.e("v_lshlrev_b32 v%d, 7, v%d" % (b, b))
        g.e("v_and_b32 v%d, 6, v%d" % (c, a))
        g.e("v_xor_b32 v%d, v%d, v%d" % (c, c, vQ))
        g.e("v_lshlrev_b32 v%d, 4, v%d" % (c, c))
        g.e("v_or_b32 v%d, v%d, v%d" % (b, b, c))
        g.e("v_lshl_add_u32 v%d, v%d, 10, v%d" % (b, a, b))
        for e1 in range(2):
            for ch in range(2):
                r = vA + (k0 * 2 + e1) * 2 + ch
                g.e("v_xor_b32 v%d, 0x%x, v%d" % (r, (e1 << 7) | (ch << 6), b))
                g.e("v_add_u32 v%d, s%d, v%d" % (r, sLB, r))
    g.e("v_lshrrev_b32 v%d, 2, v%d" % (a, vN))
    g.e("v_lshl_add_u32 v%d, v%d, 3, v%d" % (a, vQ, a))
    g.e("v_lshlrev_b32 v%d, 6, v%d" % (a, a))
    g.e("v_and_b32 v%d, 3, v%d" % (b, vN))
    g.e("v_lshl_add_u32 v%d, v%d, 3, v%d" % (a, b, a))
    g.e("v_and_b32 v%d, 1, v%d" % (b, vQ))
    g.e("v_lshl_add_u32 v%d, v%d, 5, v%d" % (a, b, a))
    g.e("v_add_u32 v%d, s%d, v%d" % (vB, sLB, a))
    g.e("v_xor_b32 v%d, 32, v%d" % (a, a))
    g.e("v_add_u32 v%d, s%d, v%d" % (vB + 1, sLB, a))
    g.e("s_lshl_b32 s%d, s%d, 7" % (sU, sLT))
    g.e("s_lshl_b32 s%d, s%d, 1" % (sU2, sW))
    g.e("s_add_u32 s%d, s%d, s%d" % (sU, sU, sU2))
    g.e("s_sub_u32 s%d, %d, s%d" % (sU, L_OUT, sU))
    g.e("v_lshlrev_b32 v%d, 5, v%d" % (a, vQ))
    g.e("v_sub_u32 v%d, s%d, v%d" % (a, sU, a))
    for jj in range(2):
        for reg in range(4):
            m = sMASK + (jj * 4 + reg) * 2
            g.e("v_cmp_lt_i32 s[%d:%d], %d, v%d" % (m, m + 1, 8 * reg + jj, a))
    g.e("s_lshl_b32 s%d, s%d, 16" % (sU, sLT))
    g.e("s_lshl_b32 s%d, s%d, 10" % (sU2, sW))
    g.e("s_add_u32 s%d, s%d, s%d" % (sU, sU, sU2))
    g.e("s_lshl_b32 s%d, s%d, 6" % (sU2, sNT))
    g.e("s_add_u32 s%d, s%d, s%d" % (sU, sU, sU2))
    g.e("v_and_b32 v%d, 1, v%d" % (a, vN))
    g.e("v_mul_u32_u24 v%d, 15, v%d" % (b, a))
    g.e("v_add_u32 v%d, v%d, v%d" % (b, b, vN))
    g.e("v_lshlrev_b32 v%d, 1, v%d" % (b, b))
    g.e("v_lshl_add_u32 v%d, v%d, 14, v%d" % (b, vQ, b))
    g.e("v_add_u32 v%d, s%d, v%d" % (vST, sU, b))
    g.e("v_mov_b32 v%d, 0x05040100" % vSEL)
    g.e("v_mov_b32 v%d, 0x03020706" % b)
    g.e("v_cmp_eq_u32 vcc, 1, v%d" % a)
    g.e("s_lshl_b32 s%d, s%d, 10" % (sU, sW))
    g.e("s_add_u32 s%d, s%d, s%d" % (sU, sU, sREC))
    g.e("v_cndmask_b32 v%d, v%d, v%d, vcc" % (vSEL, vSEL, b))
    g.e("v_lshlrev_b32 v%d, 4, v%d" % (vSTR, vN))
    g.e("v_lshl_add_u32 v%d, v%d, 8, v%d" % (a, vQ, vSTR))
    g.e("v_add_u32 v%d, s%d, v%d" % (vREC + 1, sU, a))
    g.e("v_lshlrev_b32 v%d, 4, v%d" % (a, vLANE))
    g.e("v_add_u32 v%d, s%d, v%d" % (vAW, sLB, a))
    for d in range(1, 4):
        g.e("s_add_u32 s%d, s%d, %d" % (sU, sW, d))
        g.e("s_and_b32 s%d, s%d, 3" % (sU, sU))
        g.e("s_mul_i32 s%d, s%d, %d" % (sU, sU, WREG))
        g.e("s_lshl_b32 s%d, s%d, 12" % (sU2, sW))
        g.e("s_add_u32 s%d, s%d, s%d" % (sU, sU, sU2))
        g.e("v_add_u32 v%d, s%d, v%d" % (vAR + d - 1, sU, a))
    g.e("s_lshl_b32 s%d, s%d, 8" % (sU, sW))
    g.e("v_add_u32 v%d, s%d, v%d" % (vSTW, sU, vREC + 2))


late_setup()
g.e("s_waitcnt lgkmcnt(0)")
stamp(1)


def srd(d, lo, size):
    g.e("s_mov_b32 s%d, s%d" % (d, lo))
    g.e("s_and_b32 s%d, s%d, 0xffff" % (d + 1, lo + 1))
    g.e("s_mov_b32 s%d, %d" % (d + 2, size))
    g.e("s_mov_b32 s%d, 0x00020000" % (d + 3))


srd(S_W, 6, 15 * 131072)
srd(S_X, 4, 4096000)
srd(S_WS, 18, 65536)
srd(S_DBG, 16, 256)
g.e("s_mul_i32 s%d, s%d, %d" % (sT, sB, L_OUT * 512))
g.e("s_add_u32 s%d, s14, s%d" % (S_OUT, sT))
g.e("s_addc_u32 s%d, s15, 0" % (S_OUT + 1))
g.e("s_and_b32 s%d, s%d, 0xffff" % (S_OUT + 1, S_OUT + 1))
g.e("s_mov_b32 s%d, %d" % (S_OUT + 2, L_OUT * 512))
g.e("s_mov_b32 s%d, 0x00020000" % (S_OUT + 3))

BSLOT = [17, 21, 25, 29, 33]
ASLOT = 0


def dmaA(par, kaps):
    ops = []
    for n, kap in enumerate(kaps):
        def f(kap=kap, n=n):
            if kap % 4 == 0 or n == 0:
                kb = kap & ~3
                if kb < 16:
                    g.e("s_add_u32 s%d, s%d, %d" % (sU, sROT, kb // 4))
                    g.e("s_and_b32 s%d, s%d, 3" % (sU, sU))
                    g.e("s_lshl_b32 s%d, s%d, 12" % (sU2, sU))
                    g.e("s_add_u32 m0, s%d, s%d" % (sU2, sLB))
                    g.e("s_lshl_b32 s%d, s%d, %d" % (sU, sU, 14 if CONTIG else 15))
                    g.e("s_add_u32 s%d, s%d, s%d" % (sT, sU, sXO))
                    if par:
                        g.e("s_add_u32 s%d, s%d, %d" % (sT, sT, 65536 if CONTIG else 512))
                else:
                    g.e("s_add_u32 m0, s%d, %d" % (sLB, kb * 1024))
                    g.e("s_add_u32 s%d, s%d, %d" % (sT, sXO, (16 * kb + par) * 512))
            r = vOA + (kap & 7) if kap < 16 else vOA16
            g.vmop("buffer_load_dwordx4 v%d, s[%d:%d], s%d offen offset:%d lds" % (
                r, S_X, S_X + 3, sT, (kap & 3) * 1024), ("A", par, kap))
        ops.append(f)
    return ops


def dmaB(i, p):
    slot0 = BSLOT[p % 5]
    ops = []
    for be in range(4):
        def f(be=be):
            if be == 0:
                g.e("s_add_u32 m0, s%d, %d" % (sLB, slot0 * 1024))
                g.e("s_mov_b32 s%d, %d" % (sT2, i * 131072))
            g.vmop("buffer_load_dwordx4 v%d, s[%d:%d], s%d offen offset:%d lds" % (
                vOB + be, S_W, S_W + 3, sT2, be * 1024), ("B", p, be))
        ops.append(f)
    return ops


def rdF(s, ch):
    par, e, k0 = s & 1, (s & 15) >> 1, s >> 4

    def f():
        g.lgop("ds_read_b128 %s, v%d offset:%d" % (F(s, ch), vA + (k0 * 2 + (e & 1)) * 2 + ch,
                                                   ASLOT * 1024 + (e >> 1) * 256), ("F", s, ch))
    return f


def rdW(p, ch, u, h):
    def f():
        g.lgop("ds_read_b64_tr_b16 %s, v%d offset:%d" % (Wr(p & 1, ch, u, h), vB + u,
                                                         BSLOT[p % 5] * 1024 + ch * 2048 + h * 256), ("W", p, ch, u, h))
    return f


g.e("s_cmp_lg_u32 s%d, 0" % sW)
g.e("s_cbranch_scc1 L_noinv")
g.e("buffer_atomic_swap v%d, v%d, s[%d:%d], 0 offen sc0 sc1" % (vT + 3, vREC, S_WS, S_WS + 3))
g.label("L_noinv")

g.e("s_and_b32 s%d, s%d, %d" % (sT, sMT, NVAR - 1))
for v in range(1, NVAR):
    g.e("s_cmp_eq_u32 s%d, %d" % (sT, v))
    g.e("s_cbranch_scc1 L_var%d" % v)

st0 = g.save()
end_states = []
for var in range(NVAR):
    g.restore(st0)
    g.label("L_var%d" % var)
    rot = var * (8 // NVAR)
    ev = [2 * ((k + rot) % 8) for k in range(8)]
    od = [2 * ((k + rot) % 7) + 1 for k in range(7)]
    taps = ev + od

    def items(it):
        if it == "A":
            return dmaA(0, list(range(17)))
        if it[0] == "B":
            p = int(it[1:])
            return dmaB(taps[p], p)
        if it[0] == "O":
            a, b = it[1:].split("-")
            return dmaA(1, list(range(int(a), int(b) + 1)))
        if it == "P":
            def f():
                for k, base in enumerate((10, 12, 8)):
                    g.vmop("global_load_ushort v%d, v%d, s[%d:%d]" % (vPAR + 2 * k, vT + 2, base, base + 1), "P")
                    g.vmop("global_load_ushort v%d, v%d, s[%d:%d] offset:32" % (vPAR + 2 * k + 1, vT + 2, base, base + 1), "P")
            return [f]
        raise ValueError(it)

    PROST = "--prost" in sys.argv
    pk_ = [24]

    def pst():
        if PROST:
            g.e("s_memtime s[76:77]")
            g.wait_lg_all()
            g.e("v_writelane_b32 v%d, s76, %d" % (vSTAMP, pk_[0]))
            pk_[0] += 1
    pst()
    for it in PRO:
        for n, f in enumerate(items(it)):
            f()
            if n % 4 == 3:
                pst()
    if PROST:
        g.wait_vm(("B", 0, 0)); pst()
        g.wait_vm(("B", 0, 3)); pst()
        for k in (3, 7, 11, 15, 16):
            g.wait_vm(("A", 0, k)); pst()
    g.wait_vm(("A", 0, 16))
    g.wait_vm(("B", 0, 3))
    stamp(2)

    i0 = taps[0]
    pre = [rdW(0, 0, u, h) for u in range(2) for h in range(2)]
    pre += [rdF(i0 + 2 * j, 0) for j in range(8)]
    rest = [rdW(0, 1, u, h) for u in range(2) for h in range(2)]
    rest += [rdF(i0 + 2 * j, 1) for j in range(8)]
    have = set(i0 + 2 * j for j in range(8))
    for p in range(1, 8):
        for j in range(8):
            s = taps[p] + 2 * j
            if s not in have:
                have.add(s)
                rest += [rdF(s, 0), rdF(s, 1)]
    for f in pre:
        f()
    g.e("s_cmp_lg_u32 s%d, 0" % sW)
    g.e("s_cbranch_scc1 L_nosig%d" % var)
    g.e("v_mov_b32 v%d, 1" % vT)
    g.e("s_mov_b64 exec, 1")
    g.e("buffer_atomic_add v%d, v%d, s[%d:%d], 0 offen sc1" % (vT, vCNTO, S_DBG, S_DBG + 3))
    g.e("s_mov_b64 exec, -1")
    g.e("s_branch L_sigdone%d" % var)
    g.label("L_nosig%d" % var)
    g.e("global_load_ushort v%d, v%d, s[8:9]" % (vT, vT + 2))
    g.label("L_sigdone%d" % var)
    g.vm.append("SIG")

    first_use = set()

    def mfma(j, u, p, ch):
        i = taps[p]
        s = 2 * j + i
        g.wait_lg(("F", s, ch))
        g.wait_lg(("W", p, ch, u, 1))
        c = ACC(j, u) if (j, u) in first_use else "0"
        first_use.add((j, u))
        g.e("v_mfma_f32_16x16x32_bf16 %s, %s, %s, %s" % (ACC(j, u), F(s, ch), Wr(p & 1, ch, u), c))

    fodd_list = []
    have = set()
    for p in range(8, 15):
        for j in range(8):
            s = taps[p] + 2 * j
            if s not in have:
                have.add(s)
                fodd_list += [(s, 0), (s, 1)]
    nper = (len(fodd_list) + len(FODD) - 1) // len(FODD)

    for t in range(15):
        g.c("---- variant %d position %d tap %d ----" % (var, t, taps[t]))
        if TAPST:
            g.e("s_memtime s[76:77]")
            g.wait_lg_all()
            g.e("v_writelane_b32 v%d, s76, %d" % (vSTAMP, t))
        extra = {}

        def add(pos, f):
            extra.setdefault(min(pos, 31), []).append(f)

        wpos = WPOS
        if t == 0:
            for k, f in enumerate(rest):
                add(k, f)
            wpos = 24
        dl = []
        for it in [x for x in SCHED[t].split(",") if x]:
            pre_wait = None
            if it[0] == "B":
                p = int(it[1:])
                if p >= 5:
                    assert p - 5 <= t, (t, it)
                    pre_wait = (lambda p=p: g.wait_lg(("W", p - 5, 1, 1, 1)))
                    assert not (p - 5 == t and False)
            if it[0] == "O":
                assert t >= 1
                pre_wait = (lambda: [g.wait_lg(("F", s, ch)) for s in range(0, 30, 2) for ch in range(2)])
            ops = items(it)
            if pre_wait:
                o0 = ops[0]
                ops[0] = (lambda o0=o0, pw=pre_wait: (pw(), o0()))
            dl += ops
        if t == 9:
            dl += items("P")
        if t == 12:
            dl.append(lambda: g.vmop("buffer_load_dword v%d, v%d, s[%d:%d], 0 offen sc1" % (vCNT, vCNTO, S_DBG, S_DBG + 3), "CNT"))
        if dl:
            step = max(1, 28 // len(dl))
            for k, f in enumerate(dl):
                add(2 + k * step, f)
        if t + 1 < 15:
            k = wpos
            for ch in range(2):
                add(k, lambda t=t, ch=ch: g.wait_vm(("B", t + 1, 2 * ch + 1)))
                for u in range(2):
                    for h in range(2):
                        add(k, rdW(t + 1, ch, u, h))
                        k += 1
        if t in FODD:
            idx = FODD.index(t)
            sub = fodd_list[idx * nper:(idx + 1) * nper]
            add(0, lambda: [g.wait_vm(("A", 1, k)) for k in range(17)])
            slots = [x for x in range(0, 32) if not (wpos <= x < wpos + 8)]
            for k, (s, ch) in enumerate(sub):
                add(slots[k % len(slots)], rdF(s, ch))
        if t < 14:
            order = [(j, u, ch) for ch in range(2) for j in range(8) for u in range(2)]
        else:
            order = [(j, u, ch) for j in range(8) for u in range(2) for ch in range(2)]
            for d in range(4):
                def wr(d=d):
                    g.e("s_cmp_eq_u32 s%d, %d" % (sW, d))
                    g.e("s_cbranch_scc1 L_skipw%d_%d" % (var, d))
                    for blk in range(4):
                        j, u = 2 * d + (blk >> 1), blk & 1
                        g.e("ds_write_b128 v%d, %s offset:%d" % (vAW, ACC(j, u), (j * 2 + u) * 1024))
                    g.label("L_skipw%d_%d" % (var, d))
                if d < 3:
                    add(8 * d + 8 + 5, wr)
                else:
                    lastw = wr
        for n, (j, u, ch) in enumerate(order):
            for f in extra.get(n, []):
                f()
            mfma(j, u, t, ch)
    g.e("s_nop 7")
    lastw()
    if var != NVAR - 1:
        g.e("s_branch L_epi")
    end_states.append((len(g.vm) - g.vm_done,))
assert all(e == end_states[0] for e in end_states)

g.label("L_epi")
stamp(3)
vY = 32
vR = 64
g.c("own blocks from the accumulators")
for d in range(4):
    if d < 3:
        g.e("s_cmp_lg_u32 s%d, %d" % (sW, d))
        g.e("s_cbranch_scc1 L_own%d" % (d + 1))
    for k in range(16):
        g.e("v_accvgpr_read_b32 v%d, a%d" % (vY + k, aACC + d * 16 + k))
    if d < 3:
        g.e("s_branch L_owndone")
        g.label("L_own%d" % (d + 1))
g.label("L_owndone")
g.wait_lg_all()
g.e("s_barrier")
for src in range(3):
    for blk in range(4):
        r = vR + (src * 4 + blk) * 4
        g.lgop("ds_read_b128 v[%d:%d], v%d offset:%d" % (r, r + 3, vAR + src, blk * 1024), ("R", src, blk))
for src in range(3):
    for blk in range(4):
        g.wait_lg(("R", src, blk))
        for k in range(0, 4, 2):
            y = vY + blk * 4 + k
            r = vR + (src * 4 + blk) * 4 + k
            g.e("v_pk_add_f32 v[%d:%d], v[%d:%d], v[%d:%d]" % (y, y + 1, y, y + 1, r, r + 1))
stamp(4)
g.c("---- per-wave statistics ----")
vM = 64
for jj in range(2):
    for u in range(2):
        for reg in range(4):
            m = sMASK + (jj * 4 + reg) * 2
            k = (jj * 2 + u) * 4 + reg
            g.e("v_cndmask_b32 v%d, 0, v%d, s[%d:%d]" % (vM + k, vY + k, m, m + 1))
for u in range(2):
    prs = [vM + (jj * 2 + u) * 4 + r for jj in range(2) for r in (0, 2)]
    S, Q = 80 + 2 * u, 84 + 2 * u
    pk = lambda x: "v[%d:%d]" % (x, x + 1)
    g.e("v_pk_add_f32 %s, %s, %s" % (pk(S), pk(prs[0]), pk(prs[1])))
    g.e("v_pk_mul_f32 %s, %s, %s" % (pk(Q), pk(prs[0]), pk(prs[0])))
    g.e("v_pk_add_f32 %s, %s, %s" % (pk(S), pk(S), pk(prs[2])))
    g.e("v_pk_fma_f32 %s, %s, %s, %s" % (pk(Q), pk(prs[1]), pk(prs[1]), pk(Q)))
    g.e("v_pk_add_f32 %s, %s, %s" % (pk(S), pk(S), pk(prs[3])))
    g.e("v_pk_fma_f32 %s, %s, %s, %s" % (pk(Q), pk(prs[2]), pk(prs[2]), pk(Q)))
    g.e("v_pk_fma_f32 %s, %s, %s, %s" % (pk(Q), pk(prs[3]), pk(prs[3]), pk(Q)))
g.e("v_add_f32 v80, v80, v81")
g.e("v_add_f32 v82, v82, v83")
g.e("v_add_f32 v84, v84, v85")
g.e("v_add_f32 v86, v86, v87")


def rowreduce(a, b, c, d):
    g.e("s_nop 1")
    g.e("v_permlane32_swap_b32 v%d, v%d" % (a, b))
    g.e("v_permlane32_swap_b32 v%d, v%d" % (c, d))
    g.e("s_nop 1")
    g.e("v_add_f32 v%d, v%d, v%d" % (a, a, b))
    g.e("v_add_f32 v%d, v%d, v%d" % (c, c, d))
    g.e("s_nop 1")
    g.e("v_permlane16_swap_b32 v%d, v%d" % (a, c))
    g.e("s_nop 1")
    g.e("v_add_f32 v%d, v%d, v%d" % (a, a, c))


rowreduce(80, 82, 84, 86)
STAT1 = 37 * 1024
STAT2 = 38 * 1024
g.e("ds_write_b32 v%d, v80 offset:%d" % (vSTW, STAT1))
g.c("counter check (normally long satisfied)")
g.e("s_mov_b32 s%d, 0" % sT3)
g.label("L_cnt")
g.e("s_waitcnt vmcnt(0)")
g.e("v_readfirstlane_b32 s%d, v%d" % (sT, vCNT))
g.e("s_cmp_ge_u32 s%d, 16" % sT)
g.e("s_cbranch_scc1 L_cntok")
g.e("s_add_u32 s%d, s%d, 1" % (sT3, sT3))
g.e("s_cmp_ge_u32 s%d, 0x100000" % sT3)
g.e("s_cbranch_scc1 L_cntok")
g.e("buffer_load_dword v%d, v%d, s[%d:%d], 0 offen sc1" % (vCNT, vCNTO, S_DBG, S_DBG + 3))
g.e("s_branch L_cnt")
g.label("L_cntok")
g.e("s_waitcnt lgkmcnt(0)")
g.e("s_barrier")
g.e("s_cmp_lg_u32 s%d, 0" % sW)
g.e("s_cbranch_scc1 L_nopub")
for k in range(4):
    g.e("ds_read_b32 v%d, v%d offset:%d" % (84 + k, vREC + 2, STAT1 + 256 * k))
g.e("s_waitcnt lgkmcnt(0)")
g.e("v_add_f32 v84, v84, v85")
g.e("v_add_f32 v86, v86, v87")
g.e("v_add_f32 v84, v84, v86")
g.e("v_min_u32 v84, 0xfffffffe, v84")
g.e("buffer_store_dword v84, v%d, s[%d:%d], 0 offen sc0 sc1" % (vREC, S_WS, S_WS + 3))
g.label("L_nopub")
stamp(5)
for k in range(6):
    g.e("v_lshlrev_b32 v%d, 16, v%d" % (vPAR + k, vPAR + k))
g.c("---- gather ----")
g.label("L_poll")
g.e("buffer_load_dwordx4 v[88:91], v%d, s[%d:%d], 0 offen sc0 sc1" % (vREC + 1, S_WS, S_WS + 3))
g.e("s_add_u32 s%d, s%d, 1" % (sT3, sT3))
g.e("s_waitcnt vmcnt(0)")
g.e("v_max3_u32 v92, v88, v89, v90")
g.e("v_max_u32 v92, v92, v91")
g.e("v_cmp_eq_u32 vcc, -1, v92")
g.e("s_cmp_ge_u32 s%d, 0x100000" % sT3)
g.e("s_cbranch_scc1 L_pollok")
g.e("s_cbranch_vccnz L_poll")
g.label("L_pollok")
stamp(6)
rowreduce(88, 90, 89, 91)
g.e("ds_write_b32 v%d, v88 offset:%d" % (vSTW, STAT2))
g.e("s_mov_b32 s%d, %s" % (sT, f32(1.0 / L_OUT)))
g.e("s_mov_b32 s%d, %s" % (sT2, f32(1e-5)))
g.e("s_waitcnt lgkmcnt(0)")
g.e("s_barrier")
for k in range(4):
    g.e("ds_read_b128 v[%d:%d], v%d offset:%d" % (88 + 4 * k, 91 + 4 * k, vSTR, STAT2 + 256 * k))
g.e("s_waitcnt lgkmcnt(2)")
g.e("v_pk_add_f32 v[88:89], v[88:89], v[92:93]")
g.e("v_pk_add_f32 v[90:91], v[90:91], v[94:95]")
g.e("s_waitcnt lgkmcnt(0)")
g.e("v_pk_add_f32 v[96:97], v[96:97], v[100:101]")
g.e("v_pk_add_f32 v[98:99], v[98:99], v[102:103]")
g.e("v_pk_add_f32 v[88:89], v[88:89], v[96:97]")
g.e("v_pk_add_f32 v[90:91], v[90:91], v[98:99]")
vSC, vSH = 104, 108
for u in range(2):
    S, Q = 88 + 2 * u, 89 + 2 * u
    g.e("v_mul_f32 v%d, s%d, v%d" % (S, sT, S))
    g.e("v_mul_f32 v%d, s%d, v%d" % (Q, sT, Q))
for u in range(2):
    S, Q = 88 + 2 * u, 89 + 2 * u
    g.e("v_fma_f32 v%d, -v%d, v%d, v%d" % (Q, S, S, Q))
    g.e("v_add_f32 v%d, v%d, v%d" % (S, S, vPAR + 4 + u))
for u in range(2):
    S, Q = 88 + 2 * u, 89 + 2 * u
    g.e("v_max_f32 v%d, 0, v%d" % (Q, Q))
    g.e("v_sub_f32 v%d, v%d, v%d" % (S, S, vPAR + 4 + u))
for u in range(2):
    Q = 89 + 2 * u
    g.e("v_add_f32 v%d, s%d, v%d" % (Q, sT2, Q))
for u in range(2):
    Q = 89 + 2 * u
    g.e("v_rsq_f32 v%d, v%d" % (Q, Q))
K1 = -2.0 * 0.7978845608028654 * 1.4426950408889634
K2 = K1 * 0.044715
g.e("v_mov_b32 v112, %s" % f32(K1))
g.e("v_mov_b32 v114, %s" % f32(K2))
for u in range(2):
    Q = 89 + 2 * u
    g.e("v_mul_f32 v%d, v%d, v%d" % (vSC + 2 * u, Q, vPAR + u))
for u in range(2):
    S = 88 + 2 * u
    g.e("v_fma_f32 v%d, -v%d, v%d, v%d" % (vSH + 2 * u, S, vSC + 2 * u, vPAR + 2 + u))
vU, vP = 64, 116
pk = lambda x: "v[%d:%d]" % (x, x + 1)
BC = " op_sel_hi:[1,0,0]"
for k in range(0, 16, 2):
    u = (k >> 2) & 1
    g.e("v_pk_fma_f32 %s, %s, %s, %s op_sel_hi:[1,0,0]" % (pk(vU + k), pk(vY + k), pk(vSC + 2 * u), pk(vSH + 2 * u)))
for k in range(0, 16, 2):
    g.e("v_pk_mul_f32 %s, %s, %s" % (pk(vP + k), pk(vU + k), pk(vU + k)))
for k in range(0, 16, 2):
    g.e("v_pk_fma_f32 %s, %s, %s, %s op_sel_hi:[1,0,0]" % (pk(vP + k), pk(vP + k), pk(114), pk(112)))
for k in range(0, 16, 2):
    g.e("v_pk_mul_f32 %s, %s, %s" % (pk(vP + k), pk(vP + k), pk(vU + k)))
for k in range(16):
    g.e("v_exp_f32 v%d, v%d" % (vP + k, vP + k))
for k in range(0, 16, 2):
    g.e("v_pk_add_f32 %s, %s, 1.0 op_sel_hi:[1,0]" % (pk(vP + k), pk(vP + k)))
for k in range(16):
    g.e("v_rcp_f32 v%d, v%d" % (vP + k, vP + k))
for k in range(0, 16, 2):
    g.e("v_pk_mul_f32 %s, %s, %s" % (pk(vU + k), pk(vU + k), pk(vP + k)))
vO = 136
for jj in range(2):
    for reg in range(4):
        k0 = (jj * 2 + 0) * 4 + reg
        k1 = (jj * 2 + 1) * 4 + reg
        o = vO + (jj * 4 + reg) * 2
        g.e("v_cvt_pk_bf16_f32 v%d, v%d, v%d" % (o, vU + k0, vU + k1))
g.e("s_nop 0")
for x in range(8):
    o = vO + x * 2
    g.e("v_mov_b32_dpp v%d, v%d quad_perm:[1,0,3,2] row_mask:0xf bank_mask:0xf" % (o + 1, o))
for jj in range(2):
    for reg in range(4):
        o = vO + (jj * 4 + reg) * 2
        g.e("v_perm_b32 v%d, v%d, v%d, v%d" % (o, o + 1, o, vSEL))
        g.e("buffer_store_dword v%d, v%d, s[%d:%d], s%d offen offset:%d" % (o, vST, S_OUT, S_OUT + 3, sSO + reg, 512 * jj))
if STAMPS:
    g.e("s_waitcnt vmcnt(0)")
    stamp(7)
    g.e("s_lshl_b32 s%d, s2, 2" % sT)
    g.e("s_add_u32 s%d, s%d, s%d" % (sT, sT, sW))
    if TAPST:
        g.e("s_lshl_b32 s%d, s%d, 8" % (sT2, sT))
        g.e("s_add_u32 s%d, s%d, 0x200000" % (sT2, sT2))
        for k in range(8):
            g.e("v_writelane_b32 v%d, s%d, %d" % (vSTAMP, 80 + 2 * k, 16 + k))
        g.e("v_lshlrev_b32 v%d, 2, v%d" % (vT, vLANE))
        g.e("v_add_u32 v%d, s%d, v%d" % (vT, sT2, vT))
        g.e("global_store_dword v%d, v%d, s[18:19]" % (vT, vSTAMP))
    g.e("s_lshl_b32 s%d, s%d, 7" % (sT, sT))
    g.e("s_add_u32 s%d, s%d, 0x100000" % (sT, sT))
    g.e("v_mov_b32 v%d, s%d" % (vT, sT))
    g.e("s_mov_b64 exec, 1")
    for k in range(8):
        g.e("v_mov_b32 v%d, s%d" % (vT + 2, 80 + 2 * k))
        g.e("v_mov_b32 v%d, s%d" % (vT + 3, 81 + 2 * k))
        g.e("global_store_dwordx2 v%d, v[%d:%d], s[18:19] offset:%d" % (vT, vT + 2, vT + 3, 8 * k))
        g.e("s_nop 1")
g.label("L_end")
g.e("s_endpgm")

hdr = open("standalone__self_sup_conv_stem_hubert__speech.s.ref").read().split("; Override")[0]
text = hdr + """; @launch grid=(256,1,1) block=(256,1,1) lds=163840
.amdgcn_target "amdgcn-amd-amdhsa--gfx950"
.text
.globl {n}
.p2align 8
.type {n},@function
{n}:
{body}
.section .rodata,"a"
.p2align 6
.amdhsa_kernel {n}
  .amdhsa_next_free_vgpr {nfv}
  .amdhsa_next_free_sgpr 102
  .amdhsa_accum_offset {acc}
  .amdhsa_group_segment_fixed_size 0
  .amdhsa_kernarg_size 64
  .amdhsa_user_sgpr_count 2
  .amdhsa_user_sgpr_kernarg_segment_ptr 1
  .amdhsa_system_sgpr_workgroup_id_x 1
  .amdhsa_float_denorm_mode_32 3
.end_amdhsa_kernel
""".format(n=NAME, body="\n".join(g.lines), nfv=NV + NA, acc=NV)
open(OUT, "w").write(text)
print("wrote", OUT, "lines", len(g.lines))
```
